```python
import torch

def _softmax(x, axis=-1):
    return torch.softmax(x, dim=axis)
def _gelu(x):
    return torch.nn.functional.gelu(x, approximate="tanh")
def _silu(x):
    return torch.nn.functional.silu(x)
def _sigmoid(x):
    return torch.sigmoid(x)
def _layernorm(x, axis=-1, eps=1e-5):
    m = x.mean(dim=axis, keepdim=True)
    v = x.var(dim=axis, keepdim=True, unbiased=False)
    return (x - m) / torch.sqrt(v + eps)
def _scatter_add(tgt, idx, src, axis=0):
    return tgt.clone().index_add_(axis, idx, src)
def _segment_sum(src, seg, n):
    out = torch.zeros((n,) + src.shape[1:], dtype=src.dtype)
    return out.index_add_(0, seg, src)
def _pad(x, pw):
    flat = tuple(v for pair in reversed(pw) for v in pair)
    return torch.nn.functional.pad(x, flat)

kernel_name = 'concat_heads__mha_block_cached__gqa_block_cached__near_ridge'

def setup_inputs():

    _w = (lambda a: (lambda t: t.to(torch.bfloat16) if t.is_floating_point() else t)(torch.as_tensor(a)))
    def _A_setup():
        B, Sq, D = 8, 224, 640
        H, Sk, Dh = 32, 512, 128
        return {
            "x": _w((lambda *s: torch.randn(*s, dtype=torch.bfloat16) * 0.8)(B, Sq, D)),
            "k_cache": _w((lambda *s: torch.randn(*s, dtype=torch.bfloat16) * 0.8)(B, H, Sk, Dh)),
            "v_cache": _w((lambda *s: torch.randn(*s, dtype=torch.bfloat16) * 0.05)(B, H, Sk, Dh)),
            "wq": _w((lambda *s: torch.randn(*s, dtype=torch.bfloat16) * 0.8)(D, H * Dh) * (D ** -0.5)),
            "wo": _w((lambda *s: torch.randn(*s, dtype=torch.bfloat16) * 0.05)(H * Dh, D) * ((H * Dh) ** -0.5)),
        }
    _A_in = _A_setup()

    def _B_setup():
        B, Sq, D = 8, 224, 640
        Hq, Hkv, Sk, Dh = 32, 32, 512, 128
        assert Hq % Hkv == 0, (Hq, Hkv)
        return {
            "x": _w((lambda *s: torch.randn(*s, dtype=torch.bfloat16) * 0.8)(B, Sq, D)),
            "k_cache": _w((lambda *s: torch.randn(*s, dtype=torch.bfloat16) * 0.8)(B, Hkv, Sk, Dh)),
            "v_cache": _w((lambda *s: torch.randn(*s, dtype=torch.bfloat16) * 0.05)(B, Hkv, Sk, Dh)),
            "wq": _w((lambda *s: torch.randn(*s, dtype=torch.bfloat16) * 0.8)(D, Hq * Dh) * (D ** -0.5)),
            "wo": _w((lambda *s: torch.randn(*s, dtype=torch.bfloat16) * 0.05)(Hq * Dh, D) * ((Hq * Dh) ** -0.5)),
        }
    _B_in = _B_setup()

    return {
        "A_x": _A_in["x"],
        "A_k_cache": _A_in["k_cache"],
        "A_v_cache": _A_in["v_cache"],
        "A_wq": _A_in["wq"],
        "A_wo": _A_in["wo"],
        "B_x": _B_in["x"],
        "B_k_cache": _B_in["k_cache"],
        "B_v_cache": _B_in["v_cache"],
        "B_wq": _B_in["wq"],
        "B_wo": _B_in["wo"],
    }

def reference(A_x, A_k_cache, A_v_cache, A_wq, A_wo, B_x, B_k_cache, B_v_cache, B_wq, B_wo):
    def _A_ref(x, k_cache, v_cache, wq, wo):
        B, Sq, D = x.shape
        H, Dh = 32, 128
        q = (lambda x, *d: x.permute(*d))((x @ wq).reshape(B, Sq, H, Dh), 0, 2, 1, 3)
        scores = torch.einsum("bhqd,bhkd->bhqk", q, k_cache) * (Dh ** -0.5)
        p = _softmax(scores, axis=-1)
        o = torch.einsum("bhqk,bhkd->bhqd", p, v_cache)
        return (lambda x, *d: x.permute(*d))(o, 0, 2, 1, 3).reshape(B, Sq, H * Dh) @ wo

    def _B_ref(x, k_cache, v_cache, wq, wo):
        B, Sq, D = x.shape
        Hq, Dh = 32, 128
        Hkv = k_cache.shape[1]
        rep = Hq // Hkv
        q = (lambda x, *d: x.permute(*d))((x @ wq).reshape(B, Sq, Hq, Dh), 0, 2, 1, 3)
        k = (lambda x, n, axis: torch.repeat_interleave(x, n, dim=axis))(k_cache, rep, axis=1)
        v = (lambda x, n, axis: torch.repeat_interleave(x, n, dim=axis))(v_cache, rep, axis=1)
        scores = torch.einsum("bhqd,bhkd->bhqk", q, k) * (Dh ** -0.5)
        p = _softmax(scores, axis=-1)
        o = torch.einsum("bhqk,bhkd->bhqd", p, v)
        return (lambda x, *d: x.permute(*d))(o, 0, 2, 1, 3).reshape(B, Sq, Hq * Dh) @ wo

    a = _A_ref(A_x, A_k_cache, A_v_cache, A_wq, A_wo)
    b = _B_ref(B_x, B_k_cache, B_v_cache, B_wq, B_wo)
    return torch.concatenate([a, b], axis=-1)
```

```python
import re

REG_RE = re.compile(r'^(-|\|)?([va])(\d+)\|?$')
RNG_RE = re.compile(r'^([va])\[(\d+):(\d+)\]$')
SREG_RE = re.compile(r'^s(\d+)$')
SRNG_RE = re.compile(r'^s\[(\d+):(\d+)\]$')

def regs_of(op):
    op = op.strip()
    m = REG_RE.match(op)
    if m: return [(m.group(2), int(m.group(3)))]
    m = RNG_RE.match(op)
    if m: return [(m.group(1), i) for i in range(int(m.group(2)), int(m.group(3)) + 1)]
    m = SREG_RE.match(op)
    if m: return [('s', int(m.group(1)))]
    m = SRNG_RE.match(op)
    if m: return [('s', i) for i in range(int(m.group(1)), int(m.group(2)) + 1)]
    if op in ('m0', 'vcc', 'exec', 'scc'): return [(op, 0)]
    return []

TRANS = ('v_exp_f32', 'v_rcp_f32', 'v_log_f32', 'v_rsq_f32', 'v_sqrt_f32')

class Ins:
    def __init__(self, text, tag=None, use=None):
        self.text = text
        self.tag = tag
        self.use = use
        t = text.split(';')[0].strip()
        parts = t.split(None, 1)
        self.op = parts[0] if parts else ''
        rest = parts[1] if len(parts) > 1 else ''
        ops = [o.strip() for o in rest.split(',')] if rest else []
        mods = ''
        if ops:
            last = ops[-1].split(None, 1)
            ops[-1] = last[0]
            mods = last[1] if len(last) > 1 else ''
        self.ops, self.mods = ops, mods
        op = self.op
        self.r, self.w = [], []
        self.kind = 'other'
        R = lambda idx: [x for i in idx if i < len(ops) for x in regs_of(ops[i])]
        if op.endswith(':') or op.startswith('.'):
            self.kind = 'label'
        elif op.startswith('v_mfma'):
            self.kind = 'mfma'; self.w = R([0]); self.r = R([1, 2, 3]); self.ab = R([1, 2]); self.c = R([3])
        elif op.startswith('ds_read'):
            self.kind = 'dsr'; self.w = R([0]); self.r = R([1])
        elif op.startswith('ds_write'):
            self.kind = 'dsw'; self.r = R(range(len(ops)))
        elif op.startswith('buffer_load'):
            if 'lds' in mods.split():
                self.kind = 'dma'; self.r = R(range(len(ops))) + [('m0', 0)]
            else:
                self.kind = 'vld'; self.w = R([0]); self.r = R(range(1, len(ops)))
        elif op.startswith('buffer_store'):
            self.kind = 'vst'; self.r = R(range(len(ops))); self.data = R([0])
        elif op.startswith('v_permlane'):
            self.kind = 'perm'; self.r = R([0, 1]); self.w = R([0, 1])
        elif op.startswith('v_cmp'):
            self.kind = 'valu'; self.w = R([0]); self.r = R(range(1, len(ops)))
        elif op.startswith('v_writelane'):
            self.kind = 'valu'; self.w = R([0]); self.r = R([0])
        elif op.startswith('v_readfirstlane') or op.startswith('v_readlane'):
            self.kind = 'rdlane'; self.w = R([0]); self.r = R(range(1, len(ops)))
        elif op.startswith('v_'):
            self.kind = 'trans' if op.replace('_e32', '').replace('_e64', '') in TRANS else 'valu'
            self.w = R([0]); self.r = R(range(1, len(ops)))
            if op.startswith('v_fmac'): self.r += self.w
            if op.startswith('v_cndmask') and len(ops) == 3: self.r += [('vcc', 0)]
        elif op == 's_waitcnt':
            self.kind = 'wait'
            m = re.search(r'vmcnt\((\d+)\)', t); self.vm = int(m.group(1)) if m else None
            m = re.search(r'lgkmcnt\((\d+)\)', t); self.lg = int(m.group(1)) if m else None
        elif op == 's_nop':
            self.kind = 'nop'; self.n = int(ops[0]) + 1
        elif op == 's_barrier':
            self.kind = 'barrier'
        elif op.startswith('s_load') or op.startswith('s_memtime') or op.startswith('s_memrealtime'):
            self.kind = 'smem'; self.w = R([0]); self.r = R(range(1, len(ops)))
        elif op.startswith('s_cbranch') or op.startswith('s_branch') or op == 's_endpgm':
            self.kind = 'branch'
        elif op.startswith('s_cmp'):
            self.kind = 'salu'; self.r = R(range(len(ops)))
        elif op.startswith('s_'):
            self.kind = 'salu'; self.w = R([0]); self.r = R(range(1, len(ops)))
        else:
            raise ValueError("unknown op " + text)

class Wait:
    kind = 'waitph'
    def __init__(self, lg=(), vm=()):
        self.lgt = [lg] if isinstance(lg, str) else list(lg)
        self.vmt = [vm] if isinstance(vm, str) else list(vm)

VMK = ('dma', 'vld', 'vst')
LGK = ('dsr', 'dsw')

def resolve(ins):
    out = []
    vm_hist, lg_hist = [], []
    for x in ins:
        if x.kind == 'waitph':
            parts = []
            if x.vmt:
                idx = [i for i, t in enumerate(vm_hist) if t in x.vmt]
                for t in x.vmt: assert t in vm_hist, ("vm tag never issued", t)
                n = len(vm_hist) - 1 - max(idx)
                parts.append(f"vmcnt({min(n, 63)})")
            if x.lgt:
                idx = [i for i, t in enumerate(lg_hist) if t in x.lgt]
                for t in x.lgt: assert t in lg_hist, ("lg tag never issued", t)
                n = len(lg_hist) - 1 - max(idx)
                parts.append(f"lgkmcnt({min(n, 15)})")
            out.append(Ins("s_waitcnt " + " ".join(parts)))
        else:
            if x.kind in VMK: vm_hist.append(x.tag)
            if x.kind in LGK: lg_hist.append(x.tag)
            out.append(x)
    return out

def validate(ins, name=""):
    errs = []
    pos = 0
    last_mfma_w = {}; last_mfma_c = {}; last_valu_w = {}; last_trans_w = {}; last_store = {}; last_salu_w = {}
    vm_q, lg_q = [], []
    dma_out = {}
    landed, certified = set(), set()
    rd_out = {}
    rd_done_bar = {}
    smem_out = []
    def err(x, msg): errs.append(f"[{name}] #{i} '{x.text}': {msg}")
    for i, x in enumerate(ins):
        k = x.kind
        if k == 'label': continue
        if k == 'wait':
            if x.vm is not None:
                while len(vm_q) > x.vm:
                    y = vm_q.pop(0)
                    if y.kind == 'dma' and y.tag is not None:
                        dma_out[y.tag] -= 1
                        if dma_out[y.tag] == 0: landed.add(y.tag)
            if x.lg is not None:
                if smem_out and x.lg > 0: err(x, "counted lgkm with smem outstanding")
                if x.lg == 0: smem_out = []
                while len(lg_q) > x.lg:
                    y = lg_q.pop(0)
                    if y.kind == 'dsr' and y.use is not None: rd_out[y.use] -= 1
            pos += 1; continue
        if k == 'nop': pos += x.n; continue
        if k == 'barrier':
            certified |= landed
            for t, n in rd_out.items():
                if n == 0: rd_done_bar[t] = True
            pos += 1; continue
        touched = set(x.r) | set(x.w)
        for y in vm_q + lg_q + smem_out:
            if y.kind in ('vld', 'dsr', 'smem') and touched & set(y.w) and not (x.tag == 'PF' and y.tag == 'PF'):
                err(x, f"touches pending load dest of '{y.text}'")
        def dist(d, reg): return pos - d[reg] - 1 if reg in d else 999
        isv = k in ('valu', 'trans', 'perm', 'rdlane')
        if k == 'mfma':
            for rg in x.r:
                if dist(last_valu_w, rg) < 2: err(x, f"VALU->MFMA {rg} dist {dist(last_valu_w, rg)}")
            for rg in x.ab:
                if dist(last_mfma_w, rg) < 8: err(x, f"MFMA D->A/B {rg}")
            if x.c and x.c != x.w:
                for rg in x.c:
                    if dist(last_mfma_w, rg) < 6: err(x, f"MFMA D->C overlap {rg}")
        if isv or k in ('dsr', 'dsw', 'dma', 'vld', 'vst'):
            for rg in touched:
                if dist(last_mfma_w, rg) < 8: err(x, f"MFMA D->use {rg} dist {dist(last_mfma_w, rg)}")
        if isv:
            for rg in x.w:
                if dist(last_mfma_c, rg) < 3: err(x, f"MFMA C WAR {rg}")
                if dist(last_store, rg) < 2: err(x, f"store data WAR {rg}")
            if k != 'trans':
                for rg in x.r:
                    if dist(last_trans_w, rg) < 1: err(x, f"trans->use {rg}")
            for rg in x.r:
                if rg[0] in ('s', 'vcc') and dist(last_valu_w, rg) < 2: err(x, f"VALU sgpr->VALU {rg}")
        if k in ('dsr', 'vld'):
            for rg in x.w:
                if dist(last_store, rg) < 1: err(x, f"store data WAR(load) {rg}")
        if k == 'perm':
            for rg in x.r:
                if dist(last_valu_w, rg) < 2: err(x, f"VALU->permlane {rg}")
        if k == 'rdlane':
            for rg in x.r:
                if dist(last_valu_w, rg) < 1: err(x, f"VALU->readlane {rg}")
        if k in ('dma', 'vld', 'vst'):
            for rg in x.r:
                if rg[0] == 's' and dist(last_valu_w, rg) < 5: err(x, f"VALU sgpr->VMEM {rg}")
        if k == 'salu':
            for rg in x.r:
                if rg[0] in ('s', 'vcc') and dist(last_valu_w, rg) < 1: err(x, f"VALU sgpr->SALU {rg} (pad)")
        if k == 'dma' and dist(last_salu_w, ('m0', 0)) < 1: err(x, "m0->dma")
        if k == 'dsr' and x.use is not None:
            priv = x.use.startswith('!')
            if (x.use not in landed) if priv else (x.use not in certified): err(x, f"reads uncertified LDS content {x.use}")
            rd_out[x.use] = rd_out.get(x.use, 0) + 1
            rd_done_bar[x.use] = False
        if k == 'dma':
            if x.use is not None:
                for u in ([x.use] if isinstance(x.use, str) else x.use):
                    if u in rd_done_bar and not rd_done_bar[u]: err(x, f"overwrites LDS content {u} before barrier")
                    if u not in rd_done_bar: err(x, f"overwrites never-read content {u}")
                    certified.discard(u); landed.discard(u)
            if x.tag is not None:
                dma_out[x.tag] = dma_out.get(x.tag, 0) + 1
                landed.discard(x.tag)
        if k == 'mfma':
            for rg in x.w: last_mfma_w[rg] = pos
            for rg in x.c: last_mfma_c[rg] = pos
        if isv:
            for rg in x.w:
                last_valu_w[rg] = pos
                if k == 'trans': last_trans_w[rg] = pos
                else: last_trans_w.pop(rg, None)
        if k == 'salu':
            for rg in x.w: last_salu_w[rg] = pos
        if k == 'vst' and len(x.data) >= 3:
            for rg in x.data: last_store[rg] = pos
        if k in VMK:
            vm_q.append(x)
            if len(vm_q) > 63: err(x, "vmcnt overflow >63")
        if k in LGK: lg_q.append(x)
        if k == 'smem': smem_out.append(x)
        pos += 1
    return errs

def estimate(ins):
    t = 0; mf_free = 0; last_mf = -99; last_ds = -99; last_v_end = -99; lastk = None
    for x in ins:
        k = x.kind
        if k in ('label',): continue
        if k == 'mfma':
            t = max(t, mf_free, last_ds + 8)
            last_mf = t; mf_free = t + 16; t += 4
        elif k in ('valu', 'perm', 'rdlane', 'trans'):
            t = max(t, last_mf + 8); t += 8 if k == 'trans' else 4; last_v_end = t
        elif k in ('dsr', 'dsw'):
            t = max(t, last_mf + 8, last_v_end + 4); last_ds = t; t += 4
        elif k in ('dma', 'vld', 'vst'):
            t = max(t, last_mf + 8, last_v_end + 8); t += 13
        elif k == 'nop': t += 4 * x.n
        else: t += 4
    return max(t, mf_free)
```

```python
import struct, sys
from ir import *

KNAME = "concat_heads__mha_block_cached__gqa_block_cached__near_ridge"
PROF = False

def f2h(x): return "0x%08x" % struct.unpack("<I", struct.pack("<f", x))[0]

XB = 40960; XSLOT = 28672
WB = 98304; WSLOT = 32768
KSL = [0, 8192, 32768, 40960]
VB0 = 65536
VSL = [32768, 40960, 0, 8192]
SPARE = 131072
O_BR = 14680064; O_MT = 917504; O_KS = 7168
WF_OFF = 33554432; WF_BR = 5242880; WF_NT = 655360; WF_KS = 5120
CSCALE = 1.4426950408889634 / (128 ** 0.5)
L_LO = 2.0 ** -40; L_HI = 2.0 ** 60

SX, SWQ, SK, SV, SWO, SOW, SWF, SDB = 4, 8, 12, 16, 20, 24, 28, 32
S_W, S_HH, S_HF = 36, 37, 38
S_SOFF, S_ST = 40, 41
S_W1K, S_KW, S_VW, S_WOW = 44, 45, 46, 47
S_C = 42
AX = [2, 3]; AW = [4, 5, 6, 7]; VX = 8; VW = 9
AK = [10, 11, 12, 13]; AV = list(range(14, 22)); VK = [22, 23]; VV = 24
LS = list(range(25, 32)); AWO = 25
def blk(t, j): return 32 + 8 * (t * 4 + j)
def QF(t, j): return blk(t, j)
HOLES = [blk(t, j) + 4 for j in range(4) for t in range(7)]
KF = [[HOLES[0 + jj] for jj in range(4)], [HOLES[4 + jj] for jj in range(4)]]
SB = [HOLES[8], HOLES[9]]
PF = [[HOLES[10 + t] for t in range(7)], [HOLES[20 + t] for t in range(7)]]
VF = [HOLES[17], HOLES[18], HOLES[19]]
TMPH = HOLES[27]
def vr(b, n=4): return f"v[{b}:{b+n-1}]"
def ar(b, n=4): return f"a[{b}:{b+n-1}]"
def srd(b): return f"s[{b}:{b+3}]"
def OA(dt, t): return (dt * 7 + t) * 4
def BF(par, t, s): return par * 56 + (t * 2 + s) * 4
def AF(buf, s): return 112 + buf * 8 + s * 4
WOA = 144

class Dma(Ins):
    def __init__(self, v, sr, soff, m0s, m0c, imm=0, tag=None, use=None, nt=False):
        txt = f"buffer_load_dwordx4 v{v}, {srd(sr)}, s{S_SOFF} offen" + (f" offset:{imm}" if imm else "") + (" nt" if nt else "") + " lds"
        super().__init__(txt, tag=tag, use=use)
        self.soff, self.m0s, self.m0c = soff, m0s, m0c

def dma_setup(d, prev):
    o = []
    if prev is None or (prev.m0s, prev.m0c) != (d.m0s, d.m0c):
        o.append(Ins(f"s_add_u32 m0, s{d.m0s}, {d.m0c}"))
    if prev is None or prev.soff != d.soff:
        o.append(Ins(f"s_mov_b32 s{S_SOFF}, {d.soff}"))
    return o

def link_dmas(ins):
    ds = [x for x in ins if isinstance(x, Dma)]
    nxt = {id(ds[i]): (ds[i + 1] if i + 1 < len(ds) else None) for i in range(len(ds))}
    out = []
    for i, x in enumerate(ins):
        if x.kind == 'label' and x.text == 'DMA_FIRST:':
            out += dma_setup(ds[0], None) + [Ins("s_nop 0")]
            continue
        out.append(x)
        if isinstance(x, Dma) and nxt[id(x)] is not None:
            su = dma_setup(nxt[id(x)], x)
            out += su
            if su and su[-1].text.startswith("s_add_u32 m0") and ins[i + 1] is nxt[id(x)]:
                out.append(Ins("s_nop 0"))
    return out

def stream(mf, gaps):
    o = []
    for u, m in enumerate(mf):
        o.append(m if isinstance(m, Ins) else Ins(m))
        o += gaps[u]
    return o

def vslots(g):
    n = 2
    for x in g:
        if x.kind in ('dma', 'vst', 'vld'): n -= 2
        elif x.kind in ('dsr', 'dsw', 'valu', 'perm'): n -= 1
        elif x.kind == 'trans': n -= 2
    return max(n, 0)

def fill(gaps, queue):
    qi = 0
    for u in range(len(gaps)):
        while qi < len(queue) and queue[qi][0] <= u and vslots(gaps[u]) >= (2 if queue[qi][1].kind == 'trans' else 1):
            gaps[u].append(queue[qi][1]); qi += 1
    return [q[1] for q in queue[qi:]]

def stamp(n):
    if not PROF: return []
    return [Ins("s_waitcnt lgkmcnt(0)"), Ins(f"s_memtime s[{76+2*n}:{77+2*n}]"), Ins("s_waitcnt lgkmcnt(0)")]

def dX(c):
    use = f"X{c-2}" if c >= 2 else None
    return [Dma(VX, SX, c * 128 + q * 40960, S_W1K, XB + (c & 1) * XSLOT + q * 4096, tag=f"X{c}", use=use) for q in range(7)]
def dW(c):
    use = f"W{c-2}" if c >= 2 else None
    return [Dma(VW, SWQ, c * 524288 + q * 65536, S_W1K, WB + (c & 1) * WSLOT + q * 4096, tag=f"W{c}", use=use) for q in range(8)]
def dK(n):
    use = {0: ["!WO"], 1: ["!WO"], 2: ["!WO", "X8"], 3: ["X8"]}.get(n, [f"K{n-4}"])
    return [Dma(VK[e], SK, n * 8192 + hfp * 4096, S_KW, KSL[n & 3] + hfp * 4096, imm=e * 1024, tag=f"K{n}", use=use, nt=True)
            for hfp in range(2) for e in range(2)]
def dV(n):
    use = {0: ["W8"], 1: ["W8"], 2: ["X8", "X9"], 3: ["X9"]}.get(n, [f"V{n-4}"])
    return [Dma(VV, SV, n * 8192 + hfp * 4096, S_VW, VSL[n & 3] + hfp * 4096, imm=e * 2048, tag=f"V{n}", use=use, nt=True)
            for hfp in range(2) for e in range(2)]

def rA(c, dt):
    o = []
    for s in range(2):
        for sec in range(2):
            imm = (c & 1) * WSLOT + s * 16384 + sec * 2048 + (dt & 1) * 8
            o.append(Ins(f"ds_read_b64_tr_b16 {ar(AF(dt & 3, s) + sec * 2, 2)}, v{AW[dt >> 1]} offset:{imm}", tag=f"A{c}_{dt}", use=f"W{c}"))
    return o
def rB(c, t):
    return [Ins(f"ds_read_b128 {ar(BF(c & 1, t, s))}, v{AX[s]} offset:{(c & 1) * XSLOT + t * 2048}", tag=f"B{c}_{t}", use=f"X{c}") for s in range(2)]
def rK(n, kt):
    return [Ins(f"ds_read_b128 {vr(KF[kt][jj])}, v{AK[jj]} offset:{KSL[n & 3] + kt * 4096}", tag=f"KF{n}_{kt}", use=f"K{n}") for jj in range(4)]
def vbuf(n, dt): return VF[(8 * n + dt) % 3]
def rV(n, dt):
    return [Ins(f"ds_read_b64_tr_b16 {vr(vbuf(n, dt) + sec * 2, 2)}, v{AV[dt]} offset:{VSL[n & 3] + sec * 4096}", tag=f"VF{n}_{dt}", use=f"V{n}") for sec in range(2)]

def k1_setup():
    o = []
    A = lambda s: o.append(Ins(s))
    A("s_cmp_ge_u32 s2, 256"); A("s_cbranch_scc1 K1_END")
    A("s_load_dwordx16 s[48:63], s[0:1], 0")
    A("s_load_dwordx8 s[64:71], s[0:1], 64")
    A("s_load_dwordx2 s[72:73], s[0:1], 96")
    if PROF: A("s_memtime s[76:77]")
    A("v_lshrrev_b32 v1, 6, v0")
    A("v_and_b32 v0, 63, v0")
    A("s_and_b32 s39, s2, 7")
    A(f"v_readfirstlane_b32 s{S_W}, v1")
    A("s_lshr_b32 s43, s2, 3")
    A("s_lshr_b32 s3, s39, 2")
    A("s_and_b32 s39, s39, 3")
    A("s_lshl_b32 s39, s39, 2")
    A("s_and_b32 s74, s43, 3")
    A("s_add_u32 s39, s39, s74")
    A("s_lshr_b32 s43, s43, 2")
    A(f"s_lshr_b32 s{S_HH}, s{S_W}, 1")
    A(f"s_and_b32 s{S_HF}, s{S_W}, 1")
    A(f"s_lshl_b32 s{S_W1K}, s{S_W}, 10")
    A(f"s_mul_i32 s{S_WOW}, s{S_W}, 10240")
    A("v_lshrrev_b32 v32, 3, v0")
    A("v_and_b32 v33, 7, v0")
    A("v_lshrrev_b32 v34, 1, v32")
    A("v_xor_b32 v33, v33, v34")
    A(f"s_lshl_b32 s74, s{S_HF}, 2")
    A("v_xor_b32 v33, s74, v33")
    A(f"s_lshl_b32 s75, s{S_W}, 3")
    A("v_add_u32 v32, s75, v32")
    A("v_mul_u32_u24 v32, 1280, v32")
    A(f"v_lshl_add_u32 v{VX}, v33, 4, v32")
    A("v_lshrrev_b32 v32, 5, v0")
    A("v_and_b32 v33, 31, v0")
    A(f"s_lshl_b32 s74, s{S_HF}, 1")
    A("v_add_u32 v34, s74, v32")
    A("v_lshlrev_b32 v34, 2, v34")
    A("v_xor_b32 v33, v33, v34")
    A(f"s_lshl_b32 s75, s{S_W}, 1")
    A("v_add_u32 v32, s75, v32")
    A("v_lshlrev_b32 v32, 13, v32")
    A(f"v_lshl_add_u32 v{VW}, v33, 4, v32")
    A("s_waitcnt lgkmcnt(0)")
    A("s_cmp_eq_u32 s3, 0")
    A("s_cselect_b64 s[48:49], s[48:49], s[58:59]")
    A("s_cselect_b64 s[50:51], s[50:51], s[60:61]")
    A("s_cselect_b64 s[52:53], s[52:53], s[62:63]")
    A("s_cselect_b64 s[54:55], s[54:55], s[64:65]")
    A("s_cselect_b64 s[56:57], s[56:57], s[66:67]")
    def mksrd(d, p, offreg, size):
        A(f"s_add_u32 s{d}, s{p}, s{offreg}")
        A(f"s_addc_u32 s{d+1}, s{p+1}, 0")
        A(f"s_and_b32 s{d+1}, s{d+1}, 0xffff")
        if isinstance(size, int): A(f"s_mov_b32 s{d+2}, {size}")
        else: A(size.format(d=d + 2))
        A(f"s_mov_b32 s{d+3}, 0x20000")
    A("s_mul_i32 s74, s43, 286720"); mksrd(SX, 48, 74, 286720)
    A("s_lshl_b32 s74, s39, 9"); mksrd(SWQ, 54, 74, "s_sub_u32 s{d}, 5242880, s74")
    o.append(Ins("DMA_FIRST:"))
    o += dX(0) + dW(0) + dX(1) + dW(1)
    A("s_mul_i32 s74, s39, 327680"); A("s_mul_i32 s75, s43, 160"); A("s_add_u32 s74, s74, s75")
    mksrd(SWO, 56, 74, "s_sub_u32 s{d}, 5242880, s74")
    A(f"s_mul_i32 s75, s{S_W}, 81920")
    A("s_mov_b32 s74, 6554")
    for ii in range(10):
        A(f"v_add_u32 v{32+ii}, {64*ii}, v0")
    for ii in range(10):
        A(f"v_mul_u32_u24 v{44+ii}, s74, v{32+ii}")
    for ii in range(10):
        A(f"v_lshrrev_b32 v{44+ii}, 16, v{44+ii}")
    for ii in range(10):
        A(f"v_mul_u32_u24 v{56+ii}, 1120, v{44+ii}")
    for ii in range(10):
        A(f"v_lshl_add_u32 v{32+ii}, v{32+ii}, 4, v{56+ii}")
    for ii in range(10):
        A(f"v_add_u32 v{32+ii}, s75, v{32+ii}")
    for ii in range(10):
        o.append(Dma(32 + ii, SWO, 0, S_WOW, ii * 1024, tag="!WO"))
    A("s_lshl_b32 s74, s39, 1"); A(f"s_add_u32 s74, s74, s{S_HH}")
    A("s_lshl_b32 s75, s43, 5"); A("s_add_u32 s75, s75, s74"); A("s_lshl_b32 s75, s75, 17")
    mksrd(SK, 50, 75, 131072); mksrd(SV, 52, 75, 131072)
    A(f"s_mul_i32 s74, s74, {4 * O_KS}")
    A("s_lshl_b32 s75, s43, 1"); A(f"s_add_u32 s75, s75, s{S_HF}"); A(f"s_mul_i32 s75, s75, {O_MT}")
    A("s_add_u32 s74, s74, s75"); A(f"s_mul_i32 s75, s3, {O_BR}"); A("s_add_u32 s74, s74, s75")
    mksrd(SOW, 72, 74, 4 * O_KS)
    A("s_lshl_b32 s74, s39, 3"); A(f"s_lshl_b32 s75, s{S_W}, 1"); A("s_add_u32 s74, s74, s75"); A(f"s_mul_i32 s74, s74, {WF_KS}")
    A(f"s_mul_i32 s75, s43, {WF_NT}"); A("s_add_u32 s74, s74, s75")
    A(f"s_mul_i32 s75, s3, {WF_BR}"); A("s_add_u32 s74, s74, s75"); A(f"s_add_u32 s74, s74, {WF_OFF}")
    mksrd(SWF, 72, 74, 2 * WF_KS)
    if PROF:
        A("s_mov_b32 s74, 0"); mksrd(SDB, 70, 74, 0x40000)
    A(f"s_lshl_b32 s74, s{S_HH}, 14")
    A(f"s_lshl_b32 s75, s{S_HF}, 11"); A(f"s_add_u32 s{S_KW}, s74, s75")
    A(f"s_lshl_b32 s75, s{S_HF}, 10"); A(f"s_add_u32 s{S_VW}, s74, s75"); A(f"s_add_u32 s{S_VW}, s{S_VW}, {VB0}")
    A(f"s_mov_b32 s{S_C}, {f2h(CSCALE)}")
    A("v_lshrrev_b32 v32, 4, v0"); A("v_and_b32 v33, 15, v0")
    A("v_bfe_u32 v34, v0, 2, 2"); A("v_and_b32 v35, 3, v0")
    A(f"s_mul_i32 s75, s{S_HF}, {112 * 128}"); A(f"s_add_u32 s75, s75, {XB}")
    A("v_lshrrev_b32 v36, 1, v33"); A("v_xor_b32 v36, v36, v32")
    A("v_lshlrev_b32 v37, 7, v33"); A("v_add_u32 v37, s75, v37")
    A(f"v_lshl_add_u32 v{AX[0]}, v36, 4, v37")
    A(f"v_xor_b32 v{AX[1]}, 64, v{AX[0]}")
    A(f"s_lshl_b32 s75, s{S_HH}, 8"); A(f"s_add_u32 s75, s75, {WB}")
    A("v_lshl_add_u32 v36, v32, 3, v34"); A("v_lshlrev_b32 v36, 9, v36")
    A("v_lshl_add_u32 v36, v35, 4, v36"); A("v_add_u32 v36, s75, v36")
    A(f"v_lshl_add_u32 v{AW[0]}, v34, 6, v36")
    for j in range(1, 4): A(f"v_xor_b32 v{AW[j]}, {j * 64}, v{AW[0]}")
    A("v_xor_b32 v36, v32, v33"); A("v_lshlrev_b32 v37, 8, v33"); A("v_add_u32 v37, s74, v37")
    A(f"v_lshl_add_u32 v{AK[0]}, v36, 4, v37")
    for j in range(1, 4): A(f"v_xor_b32 v{AK[j]}, {j * 64}, v{AK[0]}")
    A(f"s_add_u32 s75, s74, {VB0}")
    A("v_lshl_add_u32 v36, v32, 2, v34")
    A("v_and_b32 v37, 7, v36"); A("v_lshlrev_b32 v37, 5, v37")
    A("v_lshl_add_u32 v37, v36, 8, v37"); A("v_lshl_add_u32 v37, v35, 3, v37")
    A(f"v_add_u32 v{AV[0]}, s75, v37")
    for d in range(1, 8): A(f"v_xor_b32 v{AV[d]}, {d * 32}, v{AV[0]}")
    A("v_mul_u32_u24 v37, 160, v36"); A("v_lshl_add_u32 v37, v35, 3, v37"); A(f"v_add_u32 v{AWO}, s{S_WOW}, v37")
    A("v_xor_b32 v36, v33, v32"); A(f"s_lshl_b32 s75, s{S_HF}, 3"); A("v_xor_b32 v36, s75, v36")
    A("v_lshlrev_b32 v37, 8, v32"); A(f"s_lshl_b32 s75, s{S_HF}, 11"); A("v_add_u32 v37, s75, v37")
    A(f"v_lshl_add_u32 v{VK[0]}, v36, 4, v37"); A(f"v_xor_b32 v{VK[1]}, 64, v{VK[0]}")
    A("v_lshlrev_b32 v36, 1, v32"); A("v_xor_b32 v36, v36, v33"); A(f"s_lshl_b32 s75, s{S_HF}, 3"); A("v_xor_b32 v36, s75, v36")
    A("v_lshlrev_b32 v37, 8, v32"); A(f"s_lshl_b32 s75, s{S_HF}, 10"); A("v_add_u32 v37, s75, v37")
    A(f"v_lshl_add_u32 v{VV}, v36, 4, v37")
    A("v_lshlrev_b32 v0, 4, v0")
    for r in range(32, 256): A(f"v_mov_b32 v{r}, 0")
    return o

def conv_block(t, j):
    b = blk(t, j)
    o = [Ins(f"v_mul_f32 v{b+i}, s{S_C}, v{b+i}") for i in range(8)]
    o += [Ins(f"v_cvt_pk_bf16_f32 v{b+i}, v{b+2*i}, v{b+2*i+1}") for i in range(4)]
    return o

def qproj():
    o = []
    o += [Wait(vm=["X0", "W0"]), Ins("s_barrier")] + stamp(1)
    o += rA(0, 0) + [x for t in range(7) for x in rB(0, t)] + rA(0, 1)
    o += [Wait(lg=["A0_0", "B0_0"])]
    carry = []
    for c in range(10):
        mf = []
        for u in range(112):
            dt, t, s = u // 14, (u % 14) // 2, u % 2
            acc = vr(blk(t, dt >> 1) + 4 * (dt & 1))
            mf.append(f"v_mfma_f32_16x16x32_bf16 {acc}, {ar(AF(dt & 3, s))}, {ar(BF(c & 1, t, s))}, {acc}")
        g = [[] for _ in range(112)]
        for t in range(1, 7): g[2 * t - 1].append(Wait(lg=f"B{c}_{t}"))
        for p in range(1, 8):
            if p != 6: g[14 * p - 1].append(Wait(lg=f"A{c}_{p}"))
        for p in range(6):
            for i, x in enumerate(rA(c, p + 2)): g[14 * p + 1 + 2 * i].append(x)
        pos = [0, 2, 4, 6, 8, 9, 10, 11, 12, 16, 18, 20, 22, 23, 24, 25, 26]
        for i, d in enumerate(carry): g[pos[i]].append(d)
        vm = [f"X{c+1}", f"W{c+1}"] if c < 9 else ["K0"]
        g[83] += [Wait(lg=f"A{c}_7", vm=vm), Ins("s_barrier")]
        if c <= 7: nd = dX(c + 2) + dW(c + 2)
        if c == 7: nd += dK(0) + dK(1)
        if c == 8: nd = dV(0) + dK(2) + dV(1)
        if c == 9: nd = dK(3)
        dpos = [84, 89, 94, 99, 104, 109]
        for i, d in enumerate(nd[:6]): g[dpos[i]].append(d)
        carry = nd[6:]
        if c < 9:
            rd = rA(c + 1, 0) + [x for t in range(7) for x in rB(c + 1, t)] + rA(c + 1, 1)
            rp = [u for u in range(84, 112) if u not in dpos]
            for u, x in zip(rp, rd): g[u].append(x)
            g[111].insert(0, Wait(lg=[f"A{c+1}_0", f"B{c+1}_0"]))
        if c == 5:
            k = 0
            g[22].insert(0, Wait(vm="!WO"))
            for p in range(1, 5):
                for i in range(5):
                    f, sec = k // 2, k % 2
                    ks, ct = f // 5, f % 5
                    g[14 * p + 9 + i].append(Ins(f"ds_read_b64_tr_b16 {ar(WOA + f * 4 + sec * 2, 2)}, v{AWO} offset:{ks * 5120 + sec * 2560 + ct * 32}", tag="WOF", use="!WO"))
                    k += 1
        if c == 6:
            for f in range(10):
                u = 14 * (2 + f // 4) + 9 + (f % 4)
                if f % 4 == 0: g[u - 1].append(Ins(f"s_mov_b32 s{S_ST}, {f * 1024}"))
                g[u].append(Ins(f"buffer_store_dwordx4 {ar(WOA + f * 4)}, v0, {srd(SWF)}, s{S_ST} offen" + (f" offset:{(f % 4) * 1024}" if f % 4 else ""), tag="WOST"))
        tail = []
        if c == 9:
            q = []
            for j in range(4):
                for t in range(7):
                    e = (2 * j + 1) * 14 + 2 * t + 1 + 8
                    q += [(e, x) for x in conv_block(t, j)]
            left = fill(g, q)
            tail = [Ins("s_nop 7")] + left
        o += stream(mf, g) + tail
    o += stamp(2)
    return o

def softmax_ops(n, kt, t, sb):
    e = [Ins(f"v_exp_f32 v{sb+r}, v{sb+r}") for r in range(4)]
    first = (n == 0 and kt == 0)
    a = [Ins(f"v_mov_b32 v{LS[t]}, v{sb}") if (first and r == 0) else Ins(f"v_add_f32 v{LS[t]}, v{LS[t]}, v{sb+r}") for r in range(4)]
    p = PF[n & 1][t] + kt * 2
    c = [Ins(f"v_cvt_pk_bf16_f32 v{p+i}, v{sb+2*i}, v{sb+2*i+1}") for i in range(2)]
    return e, a, c

def body(j):
    hasQK, hasPV = j <= 14, j >= 0
    o = []
    ds = {g: [] for g in range(14)}
    if hasPV:
        for g, dt in ((0, 1), (2, 2), (3, 3), (5, 4), (6, 5), (8, 6), (10, 7)): ds[g] = rV(j, dt)
    if hasQK:
        k1 = rK(j + 1, 1); ds[1] = k1[:2]; ds[4] = k1[2:]
    if j + 2 <= 15:
        k0 = rK(j + 2, 0); ds[7] = k0[:2]; ds[9] = k0[2:]
    if j + 1 <= 15: ds[12] = rV(j + 1, 0)
    dm = (dV(j + 3) if j + 3 <= 15 else []) + (dK(j + 5) if j + 5 <= 15 else [])
    dmg = {7: 1, 8: 1, 9: 1, 10: 1, 11: 2, 12: 1, 13: 1}
    di = 0
    for g in range(14):
        mf, gaps = [], []
        kt, t = g // 7, g % 7
        pg = g - 1
        pn = j + 1
        if pg < 0: pg, pn = 13, j
        have = (pn >= 0 and pn <= 15) and not (g > 0 and not hasQK)
        e, a, c = softmax_ops(pn, pg // 7, pg % 7, SB[pg & 1]) if have else ([], [], [])
        if hasQK:
            sb = vr(SB[g & 1])
            for jj in range(4):
                mf.append(f"v_mfma_f32_16x16x32_bf16 {sb}, {vr(KF[kt][jj])}, {vr(QF(t, jj))}, {sb if jj else 0}")
                gaps.append([e[jj]] if e else [])
        elif e:
            o += [Ins("s_nop 3")] + e
        d = list(ds[g])
        mydm = dm[di: di + dmg.get(g, 0)]; di += len(mydm)
        if hasPV:
            for i in range(4):
                p = 4 * g + i
                dt, tt = p // 7, p % 7
                oa = ar(OA(dt, tt))
                mf.append(f"v_mfma_f32_16x16x32_bf16 {oa}, {vr(vbuf(j, dt))}, {vr(PF[j & 1][tt])}, {oa if j > 0 else 0}")
            if d:
                pv = [[d[0]] + a[0:1], c[0:1] + a[1:2], [d[1]] + a[2:3], c[1:2] + a[3:4]]
                if mydm: pv[3] = mydm + pv[3]
            else:
                pv = [a[0:1] + c[0:1], a[1:2] + c[1:2], a[2:4], []]
                if len(mydm) == 2: pv = [a[0:1] + c[0:1], [mydm[0]] + a[1:2] + c[1:2], a[2:4], [mydm[1]]]
                elif mydm: pv[3] = mydm
            gaps += pv
        else:
            gaps[-1] += a + c
            if g == 0: gaps[-1].append(Ins("s_nop 5"))
            gaps[0] = d + mydm + gaps[0]
        base = 4 if hasQK else 0
        if hasPV:
            for i in range(4):
                p = 4 * g + i + 1
                if p % 7 == 0 and p < 56 and i < 3: gaps[base + i].insert(0, Wait(lg=f"VF{j}_{p // 7}"))
            if (4 * g) % 7 == 0:
                w = Wait(lg=f"VF{j}_{4 * g // 7}")
                if hasQK: gaps[3].insert(0, w)
                else: o.append(w)
        if g == 6 and j <= 14:
            vm = ([f"K{j+2}"] if j + 2 <= 15 else []) + [f"V{j+1}"]
            gaps[-1] += [Wait(lg=f"KF{j+1}_1", vm=vm), Ins("s_barrier")]
        if g == 13 and j + 2 <= 15:
            gaps[-1].insert(0, Wait(lg=f"KF{j+2}_0"))
        o += stream(mf, gaps)
    return o

def lreduce(op):
    o = []
    T = [KF[0][0] + i for i in range(4)] + [KF[0][1] + i for i in range(4)]
    for sw in ("v_permlane32_swap_b32", "v_permlane16_swap_b32"):
        o += [Ins(f"v_mov_b32 v{T[t]}, v{LS[t]}") for t in range(7)]
        o += [Ins("s_nop 0")]
        o += [Ins(f"{sw} v{LS[t]}, v{T[t]}") for t in range(7)]
        o += [Ins(f"{op} v{LS[t]}, v{LS[t]}, v{T[t]}") for t in range(7)]
    return o

def check():
    o = []
    A = lambda s: o.append(Ins(s))
    A(f"v_min3_u32 v1, v{LS[0]}, v{LS[1]}, v{LS[2]}"); A(f"v_max3_u32 v2, v{LS[0]}, v{LS[1]}, v{LS[2]}")
    A(f"v_min3_u32 v1, v1, v{LS[3]}, v{LS[4]}"); A(f"v_max3_u32 v2, v2, v{LS[3]}, v{LS[4]}")
    A(f"v_min3_u32 v1, v1, v{LS[5]}, v{LS[6]}"); A(f"v_max3_u32 v2, v2, v{LS[5]}, v{LS[6]}")
    A(f"v_cmp_gt_u32 vcc, {f2h(L_LO)}, v1")
    A(f"s_mov_b32 s74, {f2h(L_HI)}")
    A("v_cmp_lt_u32 s[66:67], s74, v2")
    A("s_nop 1")
    A("s_or_b64 vcc, vcc, s[66:67]")
    A("s_cbranch_scc1 K1_SLOW")
    return o

def epilogue():
    o = [Ins("K1_EPI:")]
    o += [Ins(f"v_rcp_f32 v{LS[t]}, v{LS[t]}") for t in range(7)]
    tmp = [HOLES[i] for i in range(0, 24)]
    k = 0
    for i in range(4):
        for t in range(7):
            h0, h1 = tmp[(2 * k) % 24], tmp[(2 * k + 1) % 24]; k += 1
            for r in range(4): o.append(Ins(f"v_accvgpr_read_b32 v{h0+r}, a{OA(2*i, t)+r}"))
            for r in range(4): o.append(Ins(f"v_accvgpr_read_b32 v{h1+r}, a{OA(2*i+1, t)+r}"))
            for r in range(4): o.append(Ins(f"v_mul_f32 v{h0+r}, v{LS[t]}, v{h0+r}"))
            for r in range(4): o.append(Ins(f"v_mul_f32 v{h1+r}, v{LS[t]}, v{h1+r}"))
            o.append(Ins(f"v_cvt_pk_bf16_f32 v{h0}, v{h0}, v{h0+1}")); o.append(Ins(f"v_cvt_pk_bf16_f32 v{h0+1}, v{h0+2}, v{h0+3}"))
            o.append(Ins(f"v_cvt_pk_bf16_f32 v{h0+2}, v{h1}, v{h1+1}")); o.append(Ins(f"v_cvt_pk_bf16_f32 v{h0+3}, v{h1+2}, v{h1+3}"))
            if t % 4 == 0: o.append(Ins(f"s_mov_b32 s{S_ST}, {i * O_KS + t * 1024}"))
            o.append(Ins(f"buffer_store_dwordx4 {vr(h0)}, v0, {srd(SOW)}, s{S_ST} offen" + (f" offset:{(t % 4) * 1024}" if t % 4 else ""), tag="OST"))
    return o

def prof_out(n):
    if not PROF: return []
    o = [Ins("s_waitcnt vmcnt(0)")] + stamp(n)
    A = lambda s: o.append(Ins(s))
    A(f"s_cmp_lg_u32 s{S_W}, 0"); A("s_cbranch_scc1 K1_END")
    for i in range(n + 1):
        A(f"v_mov_b32 v{40+i}, s{76+2*i}")
    A("s_lshl_b32 s74, s2, 6"); A("s_add_u32 s74, s74, 4096"); A("v_mov_b32 v39, s74")
    for i in range(n + 1):
        A(f"buffer_store_dword v{40+i}, v39, {srd(SDB)}, 0 offen offset:{4*i}")
    return o

def slow_path():
    o = [Ins("K1_SLOW:")]
    A = lambda s: o.append(Ins(s))
    M = list(range(2, 9))
    DK = [PF[1][0] + i for i in range(4)]; DV = [PF[1][1], PF[1][1] + 1]
    A("s_waitcnt vmcnt(0) lgkmcnt(0)")
    A("s_nop 7")
    A(f"s_lshl_b32 s74, s{S_W}, 13"); A(f"s_add_u32 s74, s74, {SPARE}")
    A(f"s_lshl_b32 s75, s{S_HH}, 14"); A("s_sub_u32 s66, s74, s75"); A(f"s_sub_u32 s67, s66, {VB0}")
    for r in AK: A(f"v_add_u32 v{r}, s66, v{r}")
    for r in AV: A(f"v_add_u32 v{r}, s67, v{r}")
    A("v_lshrrev_b32 v1, 8, v0")
    A("v_bfe_u32 v9, v0, 4, 4")
    A(f"v_xor_b32 v{DK[0]}, v1, v9"); A(f"v_lshlrev_b32 v{DK[0]}, 4, v{DK[0]}"); A(f"v_lshl_add_u32 v{DK[0]}, v1, 8, v{DK[0]}")
    for e in range(1, 4): A(f"v_xor_b32 v{DK[e]}, {64 * e}, v{DK[0]}")
    A(f"v_lshlrev_b32 v{DV[0]}, 1, v1"); A(f"v_xor_b32 v{DV[0]}, v{DV[0]}, v9"); A(f"v_lshlrev_b32 v{DV[0]}, 4, v{DV[0]}")
    A(f"v_lshl_add_u32 v{DV[0]}, v1, 8, v{DV[0]}"); A(f"v_xor_b32 v{DV[1]}, 128, v{DV[0]}")
    A("s_add_u32 s75, s74, 4096")
    def load(sr, regs):
        A("s_mov_b32 m0, s74"); A("s_nop 0")
        for i in range(4): A(f"buffer_load_dwordx4 v{regs[i % len(regs)]}, {srd(sr)}, s68 offen offset:{i * 1024} lds")
        A("s_mov_b32 m0, s75"); A("s_add_u32 s69, s68, 4096")
        for i in range(4): A(f"buffer_load_dwordx4 v{regs[i % len(regs)]}, {srd(sr)}, s69 offen offset:{i * 1024} lds")
    def kread():
        A("s_waitcnt vmcnt(0)")
        for kt in range(2):
            for jj in range(4): A(f"ds_read_b128 {vr(KF[kt][jj])}, v{AK[jj]} offset:{kt * 4096}")
        A("s_waitcnt lgkmcnt(0)")
    def qk(t):
        for kt in range(2):
            sb = vr(SB[kt])
            for jj in range(4): A(f"v_mfma_f32_16x16x32_bf16 {sb}, {vr(KF[kt][jj])}, {vr(QF(t, jj))}, {sb if jj else 0}")
        A("s_nop 7")
    for t in range(7): A(f"v_mov_b32 v{LS[t]}, 0xff800000")
    A("s_mov_b32 s68, 0")
    A("K1_SL1:")
    load(SK, DK); kread()
    for t in range(7):
        qk(t)
        for kt in range(2):
            A(f"v_max3_f32 v{LS[t]}, v{LS[t]}, v{SB[kt]}, v{SB[kt]+1}"); A(f"v_max3_f32 v{LS[t]}, v{LS[t]}, v{SB[kt]+2}, v{SB[kt]+3}")
    A("s_add_u32 s68, s68, 8192"); A("s_cmp_lt_u32 s68, 131072"); A("s_cbranch_scc1 K1_SL1")
    o += lreduce("v_max_f32")
    for t in range(7): A(f"v_mov_b32 v{M[t]}, v{LS[t]}")
    for t in range(7): A(f"v_mov_b32 v{LS[t]}, 0")
    for r in range(224): A(f"v_accvgpr_write_b32 a{r}, 0")
    A("s_mov_b32 s68, 0")
    A("K1_SL2:")
    load(SK, DK); kread()
    load(SV, DV)
    for t in range(7):
        qk(t)
        for kt in range(2):
            for r in range(4): A(f"v_sub_f32 v{SB[kt]+r}, v{SB[kt]+r}, v{M[t]}")
            for r in range(4): A(f"v_exp_f32 v{SB[kt]+r}, v{SB[kt]+r}")
            A("s_nop 0")
            for r in range(4): A(f"v_add_f32 v{LS[t]}, v{LS[t]}, v{SB[kt]+r}")
            for i in range(2): A(f"v_cvt_pk_bf16_f32 v{PF[0][t] + kt * 2 + i}, v{SB[kt]+2*i}, v{SB[kt]+2*i+1}")
    A("s_waitcnt vmcnt(0)")
    for dt in range(8):
        for sec in range(2): A(f"ds_read_b64_tr_b16 {vr(VF[0] + sec * 2, 2)}, v{AV[dt]} offset:{sec * 4096}")
        A("s_waitcnt lgkmcnt(0)")
        for t in range(7): A(f"v_mfma_f32_16x16x32_bf16 {ar(OA(dt, t))}, {vr(VF[0])}, {vr(PF[0][t])}, {ar(OA(dt, t))}")
    A("s_add_u32 s68, s68, 8192"); A("s_cmp_lt_u32 s68, 131072"); A("s_cbranch_scc1 K1_SL2")
    A("s_nop 7")
    o += lreduce("v_add_f32")
    A("s_branch K1_EPI")
    return o

def k1():
    main = k1_setup() + qproj()
    main += rK(0, 0) + [Wait(lg="KF0_0")]
    for j in range(-1, 16):
        main += body(j)
        if j == -1: main += stamp(3)
    main += stamp(4)
    main += lreduce("v_add_f32") + check()
    epi = epilogue() + prof_out(5)
    main = resolve(link_dmas(main + epi))
    errs = validate(main, "k1")
    sl = slow_path()
    i1 = [i for i, x in enumerate(sl) if x.text == "K1_SL1:"][0]; i2 = [i for i, x in enumerate(sl) if x.text == "K1_SL2:"][0]
    errs += validate(sl + epilogue(), "slow")
    return main + [Ins("K1_END:"), Ins("s_endpgm")] + sl, errs, main

def k2():
    o = []
    A = lambda s: o.append(Ins(s))
    SO, SWW, SOUT = 4, 8, 12
    A("s_cmp_ge_u32 s2, 256"); A("s_cbranch_scc1 K2_END")
    A("s_load_dwordx2 s[20:21], s[0:1], 80")
    A("s_load_dwordx2 s[22:23], s[0:1], 96")
    if PROF:
        A("s_load_dwordx2 s[70:71], s[0:1], 88"); A("s_memtime s[76:77]")
    A("v_lshrrev_b32 v1, 6, v0"); A("v_and_b32 v0, 63, v0")
    A("s_and_b32 s24, s2, 7"); A(f"v_readfirstlane_b32 s{S_W}, v1"); A("s_lshr_b32 s25, s2, 3")
    A("s_lshr_b32 s26, s24, 2")
    A("s_and_b32 s24, s24, 3"); A("s_lshl_b32 s24, s24, 2"); A("s_lshr_b32 s27, s25, 3"); A("s_add_u32 s24, s24, s27")
    A("s_and_b32 s25, s25, 7")
    A("v_lshlrev_b32 v2, 4, v0")
    A(f"s_mul_i32 s28, s26, {O_BR}"); A(f"s_mul_i32 s29, s24, {O_MT}"); A("s_add_u32 s28, s28, s29")
    A(f"s_mul_i32 s29, s{S_W}, {2 * O_KS}"); A("s_add_u32 s28, s28, s29")
    A(f"s_mul_i32 s30, s26, {WF_BR}"); A(f"s_mul_i32 s29, s25, {WF_NT}"); A("s_add_u32 s30, s30, s29")
    A(f"s_mul_i32 s29, s{S_W}, {2 * WF_KS}"); A("s_add_u32 s30, s30, s29"); A(f"s_add_u32 s30, s30, {WF_OFF}")
    A("s_waitcnt lgkmcnt(0)")
    def mksrd(d, p, offreg, size):
        A(f"s_add_u32 s{d}, s{p}, s{offreg}"); A(f"s_addc_u32 s{d+1}, s{p+1}, 0"); A(f"s_and_b32 s{d+1}, s{d+1}, 0xffff")
        if isinstance(size, int): A(f"s_mov_b32 s{d+2}, {size}")
        else: A(size.format(d=d + 2))
        A(f"s_mov_b32 s{d+3}, 0x20000")
    mksrd(SO, 22, 28, O_MT); mksrd(SWW, 22, 30, WF_NT)
    def fr(buf, idx):
        return vr(8 + buf * 96 + idx * 4) if buf < 2 else ar(140 + idx * 4)
    def OFr(buf, t, s): return fr(buf, s * 7 + t)
    def WFr(buf, ct, s): return fr(buf, 14 + s * 5 + ct)
    def loads(i):
        buf = i % 3
        seq = [("W", 0, 0), ("W", 0, 1)] + [("O", t, s) for t in range(7) for s in range(2)] + [("W", ct, s) for ct in range(1, 5) for s in range(2)]
        res = []
        for kind, a, s in seq:
            if kind == "O":
                off = i * 8 * O_KS + s * O_KS + a * 1024; dst = OFr(buf, a, s); sr = SO
            else:
                off = i * 8 * WF_KS + s * WF_KS + a * 1024; dst = WFr(buf, a, s); sr = SWW
            res.append([Ins(f"s_mov_b32 s40, {off}"), Ins(f"buffer_load_dwordx4 {dst}, v2, {srd(sr)}, s40 offen", tag=f"{kind}{i}_{a}")])
        return res
    for i in range(2):
        for l in loads(i): o += l
    A("s_mul_i32 s28, s24, 286720"); A("s_mul_i32 s29, s26, 1280"); A("s_add_u32 s28, s28, s29")
    A("s_mul_i32 s29, s25, 160"); A("s_add_u32 s28, s28, s29")
    mksrd(SOUT, 20, 28, "s_sub_u32 s{d}, 4587520, s28")
    if PROF:
        A("s_mov_b32 s74, 0"); mksrd(SDB, 70, 74, 0x40000)
    A("v_and_b32 v3, 15, v0"); A("v_mul_u32_u24 v3, 2560, v3"); A("v_lshrrev_b32 v4, 4, v0"); A("v_lshl_add_u32 v3, v4, 3, v3")
    A(f"s_mul_i32 s28, s{S_W}, 35840"); A("v_add_u32 v4, s28, v2")
    A(f"s_lshl_b32 s28, s{S_W}, 10"); A("v_add_u32 v200, s28, v2")
    for sw in range(1, 4): A(f"v_add_u32 v{200 + sw}, {sw * 35840}, v200")
    o += stamp(1)
    for i in range(16):
        buf = i % 3
        mf, g = [], [[] for _ in range(70)]
        for u in range(70):
            ct, t, s = u // 14, (u % 14) // 2, u % 2
            acc = ar((ct * 7 + t) * 4)
            mf.append(f"v_mfma_f32_16x16x32_bf16 {acc}, {WFr(buf, ct, s)}, {OFr(buf, t, s)}, {acc if (i or s) else 0}")
        o.append(Wait(vm=[f"W{i}_0", f"O{i}_0"]))
        for t in range(1, 7): g[2 * t - 1].append(Wait(vm=f"O{i}_{t}"))
        for ct in range(1, 5): g[14 * ct - 1].append(Wait(vm=f"W{i}_{ct}"))
        if i + 2 < 16:
            for k, l in enumerate(loads(i + 2)): g[2 * k] += l
        o += stream(mf, g)
        if i == 0: o += stamp(2)
    o += stamp(3)
    A("s_nop 7")
    for q in range(35): o.append(Ins(f"ds_write_b128 v4, {ar(q * 4)} offset:{q * 1024}"))
    A("s_waitcnt lgkmcnt(0)"); A("s_barrier")
    for i in range(9):
        for sw in range(4):
            o.append(Ins(f"ds_read_b128 {vr(8 + (i * 4 + sw) * 4)}, v{200 + sw} offset:{i * 4096}", tag=f"R{i}"))
    for i in range(9):
        b = 8 + i * 16
        o.append(Wait(lg=f"R{i}"))
        A(f"s_add_u32 s28, s{S_W}, {4 * i}")
        A("s_mul_i32 s29, s28, 37"); A("s_lshr_b32 s29, s29, 8")
        A("s_mul_i32 s30, s29, 7"); A("s_sub_u32 s30, s28, s30")
        A("s_mul_i32 s30, s30, 40960"); A("s_lshl_b32 s29, s29, 5"); A("s_add_u32 s30, s30, s29")
        A("s_cmp_ge_u32 s28, 35"); A("s_cselect_b32 s30, 0x40000000, s30")
        for r in range(4): A(f"v_add_f32 v{b+r}, v{b+r}, v{b+4+r}")
        for r in range(4): A(f"v_add_f32 v{b+8+r}, v{b+8+r}, v{b+12+r}")
        for r in range(4): A(f"v_add_f32 v{b+r}, v{b+r}, v{b+8+r}")
        A(f"v_cvt_pk_bf16_f32 v{b}, v{b}, v{b+1}"); A(f"v_cvt_pk_bf16_f32 v{b+1}, v{b+2}, v{b+3}")
        o.append(Ins(f"buffer_store_dwordx2 {vr(b, 2)}, v3, {srd(SOUT)}, s30 offen"))
    if PROF:
        o += [Ins("s_waitcnt vmcnt(0)")] + stamp(4)
        A(f"s_cmp_lg_u32 s{S_W}, 0"); A("s_cbranch_scc1 K2_END")
        for i in range(5): A(f"v_mov_b32 v{40+i}, s{76+2*i}")
        A("s_lshl_b32 s74, s2, 6"); A("s_add_u32 s74, s74, 32768"); A("v_mov_b32 v39, s74")
        for i in range(5): A(f"buffer_store_dword v{40+i}, v39, {srd(SDB)}, 0 offen offset:{4*i}")
    o = resolve(o)
    errs = validate(o, "k2")
    return o + [Ins("K2_END:"), Ins("s_endpgm")], errs, o

def kd(name, vgpr, accum):
    return f""".amdhsa_kernel {name}
  .amdhsa_next_free_vgpr {vgpr}
  .amdhsa_next_free_sgpr 102
  .amdhsa_accum_offset {accum}
  .amdhsa_group_segment_fixed_size 0
  .amdhsa_kernarg_size 104
  .amdhsa_user_sgpr_count 2
  .amdhsa_user_sgpr_kernarg_segment_ptr 1
  .amdhsa_system_sgpr_workgroup_id_x 1
.end_amdhsa_kernel
"""

def build(path):
    c1, e1, m1 = k1()
    c2, e2, m2 = k2()
    for e in (e1 + e2)[:40]: print("ERR", e)
    print("k1 insns", len(c1), "est cycles", estimate(m1), "| k2 insns", len(c2), "est", estimate(m2), "| errors", len(e1) + len(e2))
    s = []
    s.append("; @launch kernel=attn_kernel grid=(256,1,1) block=(256,1,1) lds=163840")
    s.append("; @launch kernel=oproj_kernel grid=(256,1,1) block=(256,1,1) lds=163840")
    s.append('.amdgcn_target "amdgcn-amd-amdhsa--gfx950"')
    s.append(".text")
    for name, code in (("attn_kernel", c1), ("oproj_kernel", c2)):
        s += [f".globl {name}", ".p2align 8", f".type {name},@function", f"{name}:"]
        s += [("" if x.kind == 'label' else "  ") + x.text for x in code]
    s += ['.section .rodata,"a"', ".p2align 6", kd("attn_kernel", 512, 256), ".p2align 6", kd("oproj_kernel", 512, 256)]
    open(path, "w").write("\n".join(s) + "\n")

if __name__ == "__main__":
    if "--prof" in sys.argv: PROF = True
    out = [a for a in sys.argv[1:] if not a.startswith("--")]
    build(out[0] if out else "k.s")
```

```python
import struct, sys, json
from ir import *

PROF = False
OPT = dict(npf=3, coop=1, k0st=2, cpf=1, xnt=1, dxnt=0, dwnt=0, vpos=[7, 9, 11, 13], kpos=[1, 3, 4, 6])

def f2h(x): return "0x%08x" % struct.unpack("<I", struct.pack("<f", x))[0]

XB = 40960; XSLOT = 28672
WB = 98304; WSLOT = 32768
KSL = [0, 8192, 32768, 40960]
VB0 = 65536
VSL = [32768, 40960, 0, 8192]
SPARE = 131072; SLOWB = 32768
O_BR = 14680064; O_MT = 917504; O_KS = 7168
WF_OFF = 33554432; WF_BR = 5242880; WF_NT = 655360; WF_KS = 5120
CSCALE = 1.4426950408889634 / (128 ** 0.5)
L_LO = 2.0 ** -40; L_HI = 2.0 ** 60

SX, SWQ, SK, SV, SWO, SOW, SWF, SDB = 4, 8, 12, 16, 20, 24, 28, 32
S_W, S_HH, S_HF = 36, 37, 38
S_HP, S_B, S_BR = 39, 43, 3
S_SOFF, S_ST, S_C = 40, 41, 42
S_W1K, S_KW, S_VW, S_WOW = 44, 45, 46, 47
S_PFS, S_PFO, S_W128, S_PWA, S_PWB, S_TMP = 80, 84, 85, 86, 87, 88
S_BAD = 90
AX = [2, 3]; AW = [4, 5, 6, 7]; VX = 8; VW = 9
AK = [10, 11, 12, 13]; AV = list(range(14, 22)); VK = [22, 23]; VV = 24
LS = list(range(25, 32)); PFX, PFW, PFT, PFD = 26, 27, 28, 29
WOV = [2, 3, 4, 5, 6]; AWO = 7; WOSAVE = 224
def blk(t, j): return 32 + 8 * (t * 4 + j)
def QF(t, j): return blk(t, j)
HOLES = [blk(t, j) + 4 for j in range(4) for t in range(7)]
KF = [[HOLES[0 + jj] for jj in range(4)], [HOLES[4 + jj] for jj in range(4)]]
SB = [HOLES[8], HOLES[9]]
PF = [[HOLES[10 + t] for t in range(7)], [HOLES[20 + t] for t in range(7)]]
VF = [HOLES[17], HOLES[18], HOLES[19]]
TMPH = HOLES[27]
def vr(b, n=4): return f"v[{b}:{b+n-1}]"
def ar(b, n=4): return f"a[{b}:{b+n-1}]"
def srd(b): return f"s[{b}:{b+3}]"
def OA(dt, t): return (dt * 7 + t) * 4
def BF(par, t, s): return par * 56 + (t * 2 + s) * 4
def AF(buf, s): return 112 + buf * 8 + s * 4
MF = "v_mfma_f32_16x16x32_bf16"

class Dma(Ins):
    def __init__(self, v, sr, soff, m0s, m0c, imm=0, tag=None, use=None, nt=False):
        txt = f"buffer_load_dwordx4 v{v}, {srd(sr)}, s{S_SOFF} offen" + (f" offset:{imm}" if imm else "") + (" nt" if nt else "") + " lds"
        super().__init__(txt, tag=tag, use=use)
        self.soff, self.m0s, self.m0c = soff, m0s, m0c

def dma_setup(d, prev):
    o = []
    if prev is None or (prev.m0s, prev.m0c) != (d.m0s, d.m0c):
        o.append(Ins(f"s_add_u32 m0, s{d.m0s}, {d.m0c}"))
    if prev is None or prev.soff != d.soff:
        o.append(Ins(f"s_mov_b32 s{S_SOFF}, {d.soff}"))
    return o

def link_dmas(ins):
    ds = [x for x in ins if isinstance(x, Dma)]
    nxt = {id(ds[i]): (ds[i + 1] if i + 1 < len(ds) else None) for i in range(len(ds))}
    out = []
    for i, x in enumerate(ins):
        if x.kind == 'label' and x.text == 'DMA_FIRST:':
            out += dma_setup(ds[0], None) + [Ins("s_nop 0")]
            continue
        out.append(x)
        if isinstance(x, Dma) and nxt[id(x)] is not None:
            su = dma_setup(nxt[id(x)], x)
            out += su
            if su and su[-1].text.startswith("s_add_u32 m0") and ins[i + 1] is nxt[id(x)]:
                out.append(Ins("s_nop 0"))
    return out

def stream(mf, gaps):
    o = []
    for u, m in enumerate(mf):
        o.append(m if isinstance(m, Ins) else Ins(m))
        o += gaps[u]
    return o

def vslots(g):
    n = 2
    for x in g:
        if x.kind in ('dma', 'vst', 'vld', 'trans'): n -= 2
        elif x.kind in ('dsr', 'dsw', 'valu', 'perm'): n -= 1
    return max(n, 0)

def fill(gaps, queue):
    qi = 0
    for u in range(len(gaps)):
        while qi < len(queue) and queue[qi][0] <= u:
            x = queue[qi][1]
            need = 2 if x.kind in ('trans', 'vst') else (1 if x.kind in ('valu', 'perm') else 0)
            if vslots(gaps[u]) < need: break
            gaps[u].append(x); qi += 1
    return [q[1] for q in queue[qi:]]

STAMPS = []
def stamp(name, rt=False):
    if not PROF: return []
    n = len(STAMPS); STAMPS.append(name)
    assert n < 64
    return [Ins("s_memrealtime s[76:77]" if rt else "s_memtime s[76:77]"), Ins("s_waitcnt lgkmcnt(0)"), Ins(f"v_writelane_b32 v1, s76, {n}")]

def mksrd(o, d, p, offreg, size):
    A = lambda s: o.append(Ins(s))
    A(f"s_add_u32 s{d}, s{p}, s{offreg}")
    A(f"s_addc_u32 s{d+1}, s{p+1}, 0")
    A(f"s_and_b32 s{d+1}, s{d+1}, 0xffff")
    A(f"s_mov_b32 s{d+2}, {size}" if isinstance(size, int) else size.format(d=d + 2))
    A(f"s_mov_b32 s{d+3}, 0x20000")

def dX(c):
    use = f"X{c-2}" if c >= 2 else None
    return [Dma(VX, SX, c * 128 + q * 40960, S_W1K, XB + (c & 1) * XSLOT + q * 4096, tag=f"X{c}", use=use, nt=OPT["dxnt"]) for q in range(7)]
def dW(c):
    use = f"W{c-2}" if c >= 2 else None
    return [Dma(VW, SWQ, c * 524288 + q * 65536, S_W1K, WB + (c & 1) * WSLOT + q * 4096, tag=f"W{c}", use=use, nt=OPT["dwnt"]) for q in range(8)]
def dK(n):
    use = {0: None, 1: None, 2: ["X8"], 3: ["X8"]}.get(n, [f"K{n-4}"])
    return [Dma(VK[e], SK, n * 8192 + hfp * 4096, S_KW, KSL[n & 3] + hfp * 4096, imm=e * 1024, tag=f"K{n}", use=use, nt=True)
            for hfp in range(2) for e in range(2)]
def dV(n):
    use = {0: ["W8"], 1: ["W8"], 2: ["X8", "X9"], 3: ["X9"]}.get(n, [f"V{n-4}"])
    return [Dma(VV, SV, n * 8192 + hfp * 4096, S_VW, VSL[n & 3] + hfp * 4096, imm=e * 2048, tag=f"V{n}", use=use, nt=True)
            for hfp in range(2) for e in range(2)]
def dWO():
    return [Dma(WOV[ii % 5], SWO, (ii // 5) * 40960, S_WOW, ii * 1024, tag="!WO", use=["K12", "K13"]) for ii in range(10)]
def pfX(c0):
    return [Ins(f"s_add_u32 s{S_TMP}, s{S_W128}, {c0 * 128}"), Ins(f"buffer_load_dword v{PFD}, v{PFX}, {srd(SX)}, s{S_TMP} offen" + (" nt" if OPT["xnt"] else ""), tag="PF")]
def pfW(k):
    return [Ins(f"buffer_load_dword v{PFD + 1}, v{PFW}, {srd(SWQ)}, s{S_PWB if k else S_PWA} offen" + (" nt" if OPT["xnt"] else ""), tag="PF")]
def pfKV(k):
    return [Ins(f"s_add_u32 s{S_TMP}, s{S_PFO}, {k * 8192}"), Ins(f"buffer_load_dword v{PFD + 2}, v{PFT}, {srd(S_PFS)}, s{S_TMP} offen nt", tag="PF")]

S_CPF = 96
def cpf_setup(o, v, t, lane, endl, basel):
    A = lambda s: o.append(Ins(s))
    A(f"s_getpc_b64 s[{S_CPF}:{S_CPF+1}]")
    A(f"{basel}:")
    A(f"s_and_b32 s{S_CPF}, s{S_CPF}, 0xfffff000")
    A(f"s_and_b32 s{S_CPF+1}, s{S_CPF+1}, 0xffff")
    A(f"s_mov_b32 s{S_CPF+2}, {endl}-{basel}")
    A(f"s_mov_b32 s{S_CPF+3}, 0x20000")
    A(f"v_lshlrev_b32 v{v}, 7, v{lane}")
def cpf(v, d, k):
    return [Ins(f"s_mov_b32 s{S_TMP}, {k * 32768}"), Ins(f"buffer_load_dword v{d}, v{v}, {srd(S_CPF)}, s{S_TMP} offen", tag="PF")]

def rA(c, dt):
    o = []
    for s in range(2):
        for sec in range(2):
            imm = (c & 1) * WSLOT + s * 16384 + sec * 2048 + (dt & 1) * 8
            o.append(Ins(f"ds_read_b64_tr_b16 {ar(AF(dt & 3, s) + sec * 2, 2)}, v{AW[dt >> 1]} offset:{imm}", tag=f"A{c}_{dt}", use=f"W{c}"))
    return o
def rB(c, t):
    return [Ins(f"ds_read_b128 {ar(BF(c & 1, t, s))}, v{AX[s]} offset:{(c & 1) * XSLOT + t * 2048}", tag=f"B{c}_{t}", use=f"X{c}") for s in range(2)]
def rK(n, kt):
    return [Ins(f"ds_read_b128 {vr(KF[kt][jj])}, v{AK[jj]} offset:{KSL[n & 3] + kt * 4096}", tag=f"KF{n}_{kt}", use=f"K{n}") for jj in range(4)]
def vbuf(n, dt): return VF[(8 * n + dt) % 3]
def rV(n, dt):
    return [Ins(f"ds_read_b64_tr_b16 {vr(vbuf(n, dt) + sec * 2, 2)}, v{AV[dt]} offset:{VSL[n & 3] + sec * 4096}", tag=f"VF{n}_{dt}", use=f"V{n}") for sec in range(2)]

def k1_setup():
    o = []
    A = lambda s: o.append(Ins(s))
    A("s_cmp_ge_u32 s2, 256"); A("s_cbranch_scc1 K1_END")
    A("s_load_dwordx16 s[48:63], s[0:1], 0")
    A("s_load_dwordx8 s[64:71], s[0:1], 64")
    A("s_load_dwordx2 s[72:73], s[0:1], 96")
    o += stamp("k1_rt0", rt=True) + stamp("k1_start")
    if OPT["cpf"]:
        cpf_setup(o, 25, 33, 0, "K1_END", "K1_BASE")
        o += cpf(25, PFD, 0)
    A("v_lshrrev_b32 v32, 6, v0")
    A("v_and_b32 v0, 63, v0")
    A(f"s_and_b32 s{S_HP}, s2, 7")
    A(f"v_readfirstlane_b32 s{S_W}, v32")
    A(f"s_lshr_b32 s{S_B}, s2, 3")
    A(f"s_lshr_b32 s{S_BR}, s{S_HP}, 2")
    A(f"s_and_b32 s{S_HP}, s{S_HP}, 3")
    A(f"s_lshl_b32 s{S_HP}, s{S_HP}, 2")
    A(f"s_and_b32 s74, s{S_B}, 3")
    A(f"s_add_u32 s{S_HP}, s{S_HP}, s74")
    A(f"s_lshr_b32 s{S_B}, s{S_B}, 2")
    A(f"s_lshr_b32 s{S_HH}, s{S_W}, 1")
    A(f"s_and_b32 s{S_HF}, s{S_W}, 1")
    A(f"s_lshl_b32 s{S_W1K}, s{S_W}, 10")
    A(f"s_lshl_b32 s{S_W128}, s{S_W}, 7")
    A(f"s_lshl_b32 s{S_PWA}, s{S_W}, 20"); A(f"s_add_u32 s{S_PWB}, s{S_PWA}, {4 * 524288}")
    A(f"s_cmp_ge_u32 s{S_W}, 2"); A(f"s_cselect_b32 s{S_PWA}, 0x40000000, s{S_PWA}")
    A("s_mul_i32 s74, s74, 56")
    A(f"v_add_u32 v{PFX}, s74, v0"); A(f"v_mul_u32_u24 v{PFX}, 1280, v{PFX}")
    A("v_lshrrev_b32 v32, 5, v0"); A("v_bfe_u32 v33, v0, 2, 3"); A("v_lshl_add_u32 v32, v32, 6, v33")
    A(f"s_lshl_b32 s74, s{S_B}, 3"); A("v_add_u32 v32, s74, v32"); A("v_lshlrev_b32 v32, 13, v32")
    A("v_and_b32 v33, 3, v0"); A(f"v_lshl_add_u32 v{PFW}, v33, 7, v32")
    A("v_lshrrev_b32 v32, 3, v0"); A("v_and_b32 v33, 7, v0"); A("v_lshrrev_b32 v34, 1, v32"); A("v_xor_b32 v33, v33, v34")
    A(f"s_lshl_b32 s74, s{S_HF}, 2"); A("v_xor_b32 v33, s74, v33")
    A(f"s_lshl_b32 s75, s{S_W}, 3"); A("v_add_u32 v32, s75, v32"); A("v_mul_u32_u24 v32, 1280, v32")
    A(f"v_lshl_add_u32 v{VX}, v33, 4, v32")
    A("v_lshrrev_b32 v32, 5, v0"); A("v_and_b32 v33, 31, v0")
    A(f"s_lshl_b32 s74, s{S_HF}, 1"); A("v_add_u32 v34, s74, v32"); A("v_lshlrev_b32 v34, 2, v34"); A("v_xor_b32 v33, v33, v34")
    A(f"s_lshl_b32 s75, s{S_W}, 1"); A("v_add_u32 v32, s75, v32"); A("v_lshlrev_b32 v32, 13, v32")
    A(f"v_lshl_add_u32 v{VW}, v33, 4, v32")
    A(f"s_cmp_eq_u32 s{S_BR}, 0")
    A("s_waitcnt lgkmcnt(0)")
    A("s_cselect_b64 s[48:49], s[48:49], s[58:59]")
    A("s_cselect_b64 s[50:51], s[50:51], s[60:61]")
    A("s_cselect_b64 s[52:53], s[52:53], s[62:63]")
    A("s_cselect_b64 s[54:55], s[54:55], s[64:65]")
    A("s_cselect_b64 s[56:57], s[56:57], s[66:67]")
    A(f"s_mul_i32 s74, s{S_B}, 286720"); mksrd(o, SX, 48, 74, 286720)
    A(f"s_lshl_b32 s74, s{S_HP}, 9"); mksrd(o, SWQ, 54, 74, "s_sub_u32 s{d}, 5242880, s74")
    o += stamp("setupA")
    if OPT["coop"]: o += pfX(0) + pfW(0)
    o.append(Ins("DMA_FIRST:"))
    o += dX(0) + dW(0)
    o += stamp("dma0")
    A(f"s_mul_i32 s74, s{S_HP}, 327680"); A(f"s_mul_i32 s75, s{S_B}, 160"); A("s_add_u32 s74, s74, s75")
    A(f"s_mul_i32 s75, s{S_W}, 81920"); A("s_add_u32 s74, s74, s75")
    mksrd(o, SWO, 56, 74, "s_sub_u32 s{d}, 5242880, s74")
    A(f"s_mul_i32 s{S_WOW}, s{S_W}, 10240"); A(f"s_add_u32 s{S_WOW}, s{S_WOW}, {SPARE}")
    A(f"s_cmp_eq_u32 s{S_W}, 3"); A(f"s_cselect_b32 s{S_WOW}, 0, s{S_WOW}")
    A(f"s_lshl_b32 s74, s{S_HP}, 1"); A(f"s_add_u32 s74, s74, s{S_HH}")
    A(f"s_lshl_b32 s75, s{S_B}, 5"); A("s_add_u32 s75, s75, s74"); A("s_lshl_b32 s75, s75, 17")
    mksrd(o, SK, 50, 75, 131072); mksrd(o, SV, 52, 75, 131072)
    A(f"s_cmp_eq_u32 s{S_HF}, 0")
    A(f"s_cselect_b64 s[{S_PFS}:{S_PFS+1}], s[{SK}:{SK+1}], s[{SV}:{SV+1}]")
    A(f"s_cselect_b32 s{S_PFO}, 16384, 0")
    A(f"s_mov_b32 s{S_PFS+2}, 131072"); A(f"s_mov_b32 s{S_PFS+3}, 0x20000")
    A(f"s_mul_i32 s74, s74, {4 * O_KS}")
    A(f"s_lshl_b32 s75, s{S_B}, 1"); A(f"s_add_u32 s75, s75, s{S_HF}"); A(f"s_mul_i32 s75, s75, {O_MT}")
    A("s_add_u32 s74, s74, s75"); A(f"s_mul_i32 s75, s{S_BR}, {O_BR}"); A("s_add_u32 s74, s74, s75")
    mksrd(o, SOW, 72, 74, 4 * O_KS)
    A(f"s_lshl_b32 s74, s{S_HP}, 3"); A(f"s_lshl_b32 s75, s{S_W}, 1"); A("s_add_u32 s74, s74, s75"); A(f"s_mul_i32 s74, s74, {WF_KS}")
    A(f"s_mul_i32 s75, s{S_B}, {WF_NT}"); A("s_add_u32 s74, s74, s75")
    A(f"s_mul_i32 s75, s{S_BR}, {WF_BR}"); A("s_add_u32 s74, s74, s75"); A(f"s_add_u32 s74, s74, {WF_OFF}")
    mksrd(o, SWF, 72, 74, 2 * WF_KS)
    if PROF:
        A("s_mov_b32 s74, 0"); mksrd(o, SDB, 70, 74, 0x40000)
    A(f"s_lshl_b32 s74, s{S_HH}, 14")
    A(f"s_lshl_b32 s75, s{S_HF}, 11"); A(f"s_add_u32 s{S_KW}, s74, s75")
    A(f"s_lshl_b32 s75, s{S_HF}, 10"); A(f"s_add_u32 s{S_VW}, s74, s75"); A(f"s_add_u32 s{S_VW}, s{S_VW}, {VB0}")
    A(f"s_mov_b32 s{S_C}, {f2h(CSCALE)}")
    A("v_lshrrev_b32 v32, 4, v0"); A("v_and_b32 v33, 15, v0")
    A("v_bfe_u32 v34, v0, 2, 2"); A("v_and_b32 v35, 3, v0")
    A(f"s_mul_i32 s75, s{S_HF}, {112 * 128}"); A(f"s_add_u32 s75, s75, {XB}")
    A("v_lshrrev_b32 v36, 1, v33"); A("v_xor_b32 v36, v36, v32")
    A("v_lshlrev_b32 v37, 7, v33"); A("v_add_u32 v37, s75, v37")
    A(f"v_lshl_add_u32 v{AX[0]}, v36, 4, v37")
    A(f"v_xor_b32 v{AX[1]}, 64, v{AX[0]}")
    A(f"s_lshl_b32 s75, s{S_HH}, 8"); A(f"s_add_u32 s75, s75, {WB}")
    A("v_lshl_add_u32 v36, v32, 3, v34"); A("v_lshlrev_b32 v36, 9, v36")
    A("v_lshl_add_u32 v36, v35, 4, v36"); A("v_add_u32 v36, s75, v36")
    A(f"v_lshl_add_u32 v{AW[0]}, v34, 6, v36")
    for j in range(1, 4): A(f"v_xor_b32 v{AW[j]}, {j * 64}, v{AW[0]}")
    A("v_xor_b32 v36, v32, v33"); A("v_lshlrev_b32 v37, 8, v33"); A("v_add_u32 v37, s74, v37")
    A(f"v_lshl_add_u32 v{AK[0]}, v36, 4, v37")
    for j in range(1, 4): A(f"v_xor_b32 v{AK[j]}, {j * 64}, v{AK[0]}")
    A(f"s_add_u32 s75, s74, {VB0}")
    A("v_lshl_add_u32 v36, v32, 2, v34")
    A("v_and_b32 v37, 7, v36"); A("v_lshlrev_b32 v37, 5, v37")
    A("v_lshl_add_u32 v37, v36, 8, v37"); A("v_lshl_add_u32 v37, v35, 3, v37")
    A(f"v_add_u32 v{AV[0]}, s75, v37")
    for d in range(1, 8): A(f"v_xor_b32 v{AV[d]}, {d * 32}, v{AV[0]}")
    A("v_mul_u32_u24 v37, 160, v36"); A("v_lshl_add_u32 v37, v35, 3, v37"); A(f"v_add_u32 v37, s{S_WOW}, v37")
    A(f"v_accvgpr_write_b32 a{WOSAVE + 5}, v37")
    A("v_xor_b32 v36, v33, v32"); A(f"s_lshl_b32 s75, s{S_HF}, 3"); A("v_xor_b32 v36, s75, v36")
    A("v_lshlrev_b32 v37, 8, v32"); A(f"s_lshl_b32 s75, s{S_HF}, 11"); A("v_add_u32 v37, s75, v37")
    A(f"v_lshl_add_u32 v{VK[0]}, v36, 4, v37"); A(f"v_xor_b32 v{VK[1]}, 64, v{VK[0]}")
    A("v_lshlrev_b32 v36, 1, v32"); A("v_xor_b32 v36, v36, v33"); A(f"s_lshl_b32 s75, s{S_HF}, 3"); A("v_xor_b32 v36, s75, v36")
    A("v_lshlrev_b32 v37, 8, v32"); A(f"s_lshl_b32 s75, s{S_HF}, 10"); A("v_add_u32 v37, s75, v37")
    A(f"v_lshl_add_u32 v{VV}, v36, 4, v37")
    A(f"v_lshlrev_b32 v{PFT}, 7, v0")
    A("s_mov_b32 s74, 6554")
    for ii in range(5): A(f"v_add_u32 v{40+ii}, {64*ii}, v0")
    for ii in range(5): A(f"v_mul_u32_u24 v{48+ii}, s74, v{40+ii}")
    for ii in range(5): A(f"v_lshrrev_b32 v{48+ii}, 16, v{48+ii}")
    for ii in range(5): A(f"v_mul_u32_u24 v{48+ii}, 1120, v{48+ii}")
    for ii in range(5): A(f"v_lshl_add_u32 v{40+ii}, v{40+ii}, 4, v{48+ii}")
    for ii in range(5): A(f"v_accvgpr_write_b32 a{WOSAVE + ii}, v{40+ii}")
    A("v_lshlrev_b32 v0, 4, v0")
    for r in range(32, 144): A(f"v_mov_b32 v{r}, 0")
    o += dX(1) + dW(1)
    for r in range(144, 256): A(f"v_mov_b32 v{r}, 0")
    return o

def conv_block(t, j):
    b = blk(t, j)
    o = [Ins(f"v_mul_f32 v{b+i}, s{S_C}, v{b+i}") for i in range(8)]
    o += [Ins(f"v_cvt_pk_bf16_f32 v{b+i}, v{b+2*i}, v{b+2*i+1}") for i in range(4)]
    return o

def qproj():
    o = []
    o += stamp("setupB") + [Wait(vm=["X0", "W0"]), Ins("s_barrier")] + stamp("first")
    o += rA(0, 0) + [x for t in range(7) for x in rB(0, t)] + rA(0, 1)
    o += [Wait(lg=["A0_0", "B0_0"])]
    carry = []
    for c in range(10):
        mf = []
        for u in range(112):
            dt, t, s = u // 14, (u % 14) // 2, u % 2
            acc = vr(blk(t, dt >> 1) + 4 * (dt & 1))
            mf.append(f"{MF} {acc}, {ar(AF(dt & 3, s))}, {ar(BF(c & 1, t, s))}, {acc}")
        g = [[] for _ in range(112)]
        for t in range(1, 7): g[2 * t - 1].append(Wait(lg=f"B{c}_{t}"))
        for p in range(1, 8):
            if p != 6: g[14 * p - 1].append(Wait(lg=f"A{c}_{p}"))
        for p in range(6):
            for i, x in enumerate(rA(c, p + 2)): g[14 * p + 1 + 2 * i].append(x)
        pos = [0, 2, 4, 6, 8, 9, 10, 11, 12, 22, 24, 26, 36, 38, 40]
        for i, d in enumerate(carry): g[pos[i]] += d
        vm = [f"X{c+1}", f"W{c+1}"] if c < 9 else ["K0"]
        if PROF: g[83] += [Wait(lg=f"A{c}_7")] + stamp(f"q{c}a") + [Wait(vm=vm), Ins("s_barrier")] + stamp(f"q{c}b")
        else: g[83] += [Wait(lg=f"A{c}_7", vm=vm), Ins("s_barrier")]
        if c <= 7: nd = dX(c + 2) + dW(c + 2)
        if c == 8: nd = dV(0) + dK(2) + dV(1)
        if c == 9: nd = dK(3)
        if c == OPT["k0st"]: nd += dK(0)
        if c == OPT["k0st"] + 1: nd += dK(1)
        nd = [[d] for d in nd]
        if OPT["coop"]:
            if c == 0: nd.append(pfX(4))
            if c == 1: nd.append(pfW(1))
            if c == 2: nd.insert(15, pfX(8))
        p0 = OPT["k0st"] + 2
        if p0 <= c < p0 + OPT["npf"]: nd.append(pfKV(c - p0))
        dpos = [84, 89, 94, 99, 104, 109]
        for i, d in enumerate(nd[:6]): g[dpos[i]] += d
        carry = nd[6:]
        if c < 9:
            rd = rA(c + 1, 0) + [x for t in range(7) for x in rB(c + 1, t)] + rA(c + 1, 1)
            rp = [u for u in range(84, 112) if u not in dpos]
            for u, x in zip(rp, rd): g[u].append(x)
            g[111].insert(0, Wait(lg=[f"A{c+1}_0", f"B{c+1}_0"]))
        tail = []
        if c == 9:
            for i, x in enumerate(rK(0, 0)): g[100 + 2 * i + 1].append(x)
            q = []
            for j in range(4):
                for t in range(7):
                    e = (2 * j + 1) * 14 + 2 * t + 1 + 8
                    q += [(e, x) for x in conv_block(t, j)]
            left = fill(g, q)
            tail = [Ins("s_nop 7")] + left
        o += stream(mf, g) + tail
    o += [Ins("v_mov_b32 v9, v25"), Wait(lg="KF0_0", vm="PF" if (OPT["coop"] or OPT["npf"] or OPT["cpf"]) else ())] + stamp("qend")
    return o

def softmax_ops(n, kt, t, sb):
    e = [Ins(f"v_exp_f32 v{sb+r}, v{sb+r}") for r in range(4)]
    first = (n == 0 and kt == 0)
    a = [Ins(f"v_mov_b32 v{LS[t]}, v{sb}") if (first and r == 0) else Ins(f"v_add_f32 v{LS[t]}, v{LS[t]}, v{sb+r}") for r in range(4)]
    p = PF[n & 1][t] + kt * 2
    c = [Ins(f"v_cvt_pk_bf16_f32 v{p+i}, v{sb+2*i}, v{sb+2*i+1}") for i in range(2)]
    return e, a, c

def body(j):
    hasPV = j >= 0
    o = []
    ds = {g: [] for g in range(14)}
    if hasPV:
        for g, dt in ((0, 1), (2, 2), (3, 3), (5, 4), (6, 5), (8, 6), (10, 7)): ds[g] = rV(j, dt)
    k1 = rK(j + 1, 1); ds[1] = k1[:2]; ds[4] = k1[2:]
    if j + 2 <= 15:
        k0 = rK(j + 2, 0); ds[7] = k0[:2]; ds[9] = k0[2:]
    ds[12] = rV(j + 1, 0)
    dm = {g: [] for g in range(14)}
    if j + 3 <= 15:
        for g, d in zip(OPT["vpos"], dV(j + 3)): dm[g].append(d)
    if 4 <= j + 4 <= 15 and j >= 0:
        for g, d in zip(OPT["kpos"], dK(j + 4)): dm[g].append(d)
    extra = {g: [] for g in range(14)}
    if j == 12:
        extra[11] = [Ins(f"v_accvgpr_read_b32 v{WOV[i]}, a{WOSAVE + i}") for i in range(5)] + [Ins(f"v_accvgpr_read_b32 v{AWO}, a{WOSAVE + 5}")]
    if j == 13:
        for g, d in zip([0, 1, 2, 4, 5, 7, 9, 11, 11, 13], dWO()): dm[g].append(d)
    if OPT["cpf"] and j in (0, 9): dm[11] += cpf(9, 8, 1 if j == 0 else 2)
    for g in range(14):
        mf, gaps = [], []
        kt, t = g // 7, g % 7
        pg, pn = (g - 1, j + 1) if g > 0 else (13, j)
        e, a, c = softmax_ops(pn, pg // 7, pg % 7, SB[pg & 1]) if pn >= 0 else ([], [], [])
        sb = vr(SB[g & 1])
        for jj in range(4):
            mf.append(f"{MF} {sb}, {vr(KF[kt][jj])}, {vr(QF(t, jj))}, {sb if jj else 0}")
            gaps.append([e[jj]] if e else [])
        d = list(ds[g]); mydm = dm[g]
        if hasPV:
            for i in range(4):
                p = 4 * g + i
                dt, tt = p // 7, p % 7
                oa = ar(OA(dt, tt))
                mf.append(f"{MF} {oa}, {vr(vbuf(j, dt))}, {vr(PF[j & 1][tt])}, {oa if j > 0 else 0}")
            if d:
                pv = [[d[0]] + a[0:1], c[0:1] + a[1:2], [d[1]] + a[2:3], mydm + c[1:2] + a[3:4]]
            else:
                pv = [a[0:1] + c[0:1], mydm[1:] + a[1:2] + c[1:2], a[2:4], mydm[:1]]
            pv[2] += extra[g]
            gaps += pv
            for i in range(4):
                p = 4 * g + i + 1
                if p % 7 == 0 and p < 56 and i < 3: gaps[4 + i].insert(0, Wait(lg=f"VF{j}_{p // 7}"))
            if (4 * g) % 7 == 0: gaps[3].insert(0, Wait(lg=f"VF{j}_{4 * g // 7}"))
        else:
            gaps[-1] += a + c
            if g == 0: gaps[-1].append(Ins("s_nop 5"))
            gaps[0] = d + mydm + gaps[0]
        if g == 6:
            vm = ([f"K{j+2}"] if j + 2 <= 15 else []) + [f"V{j+1}"]
            gaps[-1] += [Wait(lg=f"KF{j+1}_1", vm=vm), Ins("s_barrier")] + stamp(f"P{j}")
        if g == 13:
            gaps[-1].insert(0, Wait(lg=f"KF{j+2}_0" if j + 2 <= 15 else "VF15_0"))
        o += stream(mf, gaps)
    return o

def lreduce(op, T):
    o = []
    for sw in ("v_permlane32_swap_b32", "v_permlane16_swap_b32"):
        o += [Ins(f"v_mov_b32 v{T[t]}, v{LS[t]}") for t in range(7)]
        o += [Ins("s_nop 0")]
        o += [Ins(f"{sw} v{LS[t]}, v{T[t]}") for t in range(7)]
        o += [Ins(f"{op} v{LS[t]}, v{LS[t]}, v{T[t]}") for t in range(7)]
    return o

def check():
    o = []
    A = lambda s: o.append(Ins(s))
    A(f"v_min3_u32 v3, v{LS[0]}, v{LS[1]}, v{LS[2]}"); A(f"v_max3_u32 v2, v{LS[0]}, v{LS[1]}, v{LS[2]}")
    A(f"v_min3_u32 v3, v3, v{LS[3]}, v{LS[4]}"); A(f"v_max3_u32 v2, v2, v{LS[3]}, v{LS[4]}")
    A(f"v_min3_u32 v3, v3, v{LS[5]}, v{LS[6]}"); A(f"v_max3_u32 v2, v2, v{LS[5]}, v{LS[6]}")
    A(f"s_mov_b32 s74, {f2h(L_HI)}")
    A(f"v_cmp_gt_u32 vcc, {f2h(L_LO)}, v3")
    A(f"v_cmp_lt_u32 s[{S_BAD}:{S_BAD+1}], s74, v2")
    return o

def epi_block(i, t, h0, h1, pk):
    o = []
    for r in range(4): o.append(Ins(f"v_accvgpr_read_b32 v{h0+r}, a{OA(2*i, t)+r}"))
    for r in range(4): o.append(Ins(f"v_accvgpr_read_b32 v{h1+r}, a{OA(2*i+1, t)+r}"))
    for h in (h0, h1):
        for r in range(4): o.append(Ins(f"v_mul_f32 v{h+r}, v{LS[t]}, v{h+r}"))
    o.append(Ins(f"v_cvt_pk_bf16_f32 v{h0}, v{h0}, v{h0+1}")); o.append(Ins(f"v_cvt_pk_bf16_f32 v{h0+1}, v{h0+2}, v{h0+3}"))
    o.append(Ins(f"v_cvt_pk_bf16_f32 v{h0+2}, v{h1}, v{h1+1}")); o.append(Ins(f"v_cvt_pk_bf16_f32 v{h0+3}, v{h1+2}, v{h1+3}"))
    if t % 4 == 0: o.append(Ins(f"s_mov_b32 s{S_ST}, {i * O_KS + t * 1024}"))
    o.append(Ins(f"buffer_store_dwordx4 {vr(h0)}, v0, {srd(SOW)}, s{S_ST} offen" + (f" offset:{(t % 4) * 1024}" if t % 4 else ""), tag=f"OST{i}"))
    return o

EPT = [PF[0][4], PF[0][5], PF[0][6], TMPH, SB[0], SB[1]]
def epi_blocks():
    res = []; k = 0
    for i in range(4):
        for t in range(7):
            res.append((i, epi_block(i, t, EPT[(2 * k) % 6], EPT[(2 * k + 1) % 6], False))); k += 1
    return res

def final_body():
    j = 15
    o = []
    e, a, c = softmax_ops(15, 1, 6, SB[1])
    o += e[:2]
    mf = []
    for p in range(56):
        dt, tt = p // 7, p % 7
        oa = ar(OA(dt, tt))
        mf.append(f"{MF} {oa}, {vr(vbuf(j, dt))}, {vr(PF[j & 1][tt])}, {oa}")
    g = [[] for _ in range(56)]
    for gg, dt in ((0, 1), (2, 2), (3, 3), (5, 4), (6, 5), (8, 6), (10, 7)):
        r = rV(j, dt); g[4 * gg].append(r[0]); g[4 * gg + 2].append(r[1])
    g[0].append(c[0]); g[1].append(e[2]); g[2].append(a[0]); g[3].append(e[3]); g[4] += [a[1], c[1]]; g[5] += [a[2], a[3]]
    for dt in range(1, 8): g[7 * dt - 1].insert(0, Wait(lg=f"VF15_{dt}"))
    WOF = [KF[0][0], KF[0][1], KF[0][2], KF[0][3], KF[1][0], KF[1][1], KF[1][2], KF[1][3], PF[0][0], PF[0][1]]
    g[5].insert(0, Wait(vm="!WO"))
    rp = [6, 7, 9, 11, 13, 15, 16, 17, 18, 19, 21, 23, 25, 27, 28, 29, 30, 31, 33, 35]
    for k, u in enumerate(rp):
        f, sec = k // 2, k % 2
        ks, ct = f // 5, f % 5
        g[u].append(Ins(f"ds_read_b64_tr_b16 {vr(WOF[f] + sec * 2, 2)}, v{AWO} offset:{ks * 5120 + sec * 2560 + ct * 32}", tag=f"WOF{f}", use="!WO"))
    sp = [36, 37, 38, 39, 41, 43, 44, 45, 46, 47]
    for f, u in enumerate(sp):
        g[u - 1].insert(0, Wait(lg=f"WOF{f}"))
        if f % 4 == 0: g[u - 1].append(Ins(f"s_mov_b32 s{S_TMP}, {f * 1024}"))
        g[u].append(Ins(f"buffer_store_dwordx4 {vr(WOF[f])}, v0, {srd(SWF)}, s{S_TMP} offen" + (f" offset:{(f % 4) * 1024}" if f % 4 else ""), tag="WOST"))
    T = [PF[0][2] + i for i in range(4)] + [PF[0][3] + i for i in range(4)]
    q = [(6, x) for x in lreduce("v_add_f32", T) + check() + [Ins(f"v_rcp_f32 v{LS[t]}, v{LS[t]}") for t in range(7)]]
    for i, b in epi_blocks(): q += [(14 * i + 13 + 6, x) for x in b]
    left = fill(g, q)
    o += stream(mf, g)
    o += stamp("attend")
    k = max([i + 1 for i, x in enumerate(left) if x.text.startswith("v_cmp_lt_u32")] + [0])
    o += left[:k] + [Ins("s_nop 1"), Ins(f"s_or_b64 s[{S_BAD}:{S_BAD+1}], vcc, s[{S_BAD}:{S_BAD+1}]"), Ins("s_cbranch_scc1 K1_SLOW")]
    o += left[k:]
    return o

def prof_out(base, lane16, endl):
    if not PROF: return []
    o = stamp("issued") + [Ins("s_waitcnt vmcnt(0)")] + stamp("end") + stamp("rt1", rt=True)
    A = lambda s: o.append(Ins(s))
    A(f"s_cmp_lg_u32 s{S_W}, 0"); A(f"s_cbranch_scc1 {endl}")
    A("s_lshl_b32 s74, s2, 8"); A(f"s_add_u32 s74, s74, {base}")
    A(f"v_lshrrev_b32 v39, 2, v{lane16}"); A("v_add_u32 v39, s74, v39")
    A(f"buffer_store_dword v1, v39, {srd(SDB)}, 0 offen")
    return o

def slow_path():
    o = [Ins("K1_SLOW:")]
    A = lambda s: o.append(Ins(s))
    M = list(range(2, 9))
    T = [KF[0][0] + i for i in range(4)] + [KF[0][1] + i for i in range(4)]
    DK = [PF[1][0] + i for i in range(4)]; DV = [PF[1][1], PF[1][1] + 1]; G, N = PF[1][1] + 2, PF[1][1] + 3
    A("s_waitcnt vmcnt(0) lgkmcnt(0)")
    A("s_nop 7")
    A(f"s_lshl_b32 s74, s{S_W}, 13"); A(f"s_add_u32 s74, s74, {SLOWB}")
    A(f"s_lshl_b32 s75, s{S_HH}, 14"); A("s_sub_u32 s66, s74, s75"); A(f"s_sub_u32 s67, s66, {VB0}")
    for r in AK: A(f"v_add_u32 v{r}, s66, v{r}")
    for r in AV: A(f"v_add_u32 v{r}, s67, v{r}")
    A(f"v_lshrrev_b32 v{G}, 8, v0")
    A(f"v_bfe_u32 v{N}, v0, 4, 4")
    A(f"v_xor_b32 v{DK[0]}, v{G}, v{N}"); A(f"v_lshlrev_b32 v{DK[0]}, 4, v{DK[0]}"); A(f"v_lshl_add_u32 v{DK[0]}, v{G}, 8, v{DK[0]}")
    for e in range(1, 4): A(f"v_xor_b32 v{DK[e]}, {64 * e}, v{DK[0]}")
    A(f"v_lshlrev_b32 v{DV[0]}, 1, v{G}"); A(f"v_xor_b32 v{DV[0]}, v{DV[0]}, v{N}"); A(f"v_lshlrev_b32 v{DV[0]}, 4, v{DV[0]}")
    A(f"v_lshl_add_u32 v{DV[0]}, v{G}, 8, v{DV[0]}"); A(f"v_xor_b32 v{DV[1]}, 128, v{DV[0]}")
    A("s_add_u32 s75, s74, 4096")
    def load(sr, regs):
        A("s_mov_b32 m0, s74"); A("s_nop 0")
        for i in range(4): A(f"buffer_load_dwordx4 v{regs[i % len(regs)]}, {srd(sr)}, s68 offen offset:{i * 1024} lds")
        A("s_mov_b32 m0, s75"); A("s_add_u32 s69, s68, 4096")
        for i in range(4): A(f"buffer_load_dwordx4 v{regs[i % len(regs)]}, {srd(sr)}, s69 offen offset:{i * 1024} lds")
    def kread():
        A("s_waitcnt vmcnt(0)")
        for kt in range(2):
            for jj in range(4): A(f"ds_read_b128 {vr(KF[kt][jj])}, v{AK[jj]} offset:{kt * 4096}")
        A("s_waitcnt lgkmcnt(0)")
    def qk(t):
        for kt in range(2):
            sb = vr(SB[kt])
            for jj in range(4): A(f"{MF} {sb}, {vr(KF[kt][jj])}, {vr(QF(t, jj))}, {sb if jj else 0}")
        A("s_nop 7")
    for t in range(7): A(f"v_mov_b32 v{LS[t]}, 0xff800000")
    A("s_mov_b32 s68, 0")
    A("K1_SL1:")
    load(SK, DK); kread()
    for t in range(7):
        qk(t)
        for kt in range(2):
            A(f"v_max3_f32 v{LS[t]}, v{LS[t]}, v{SB[kt]}, v{SB[kt]+1}"); A(f"v_max3_f32 v{LS[t]}, v{LS[t]}, v{SB[kt]+2}, v{SB[kt]+3}")
    A("s_add_u32 s68, s68, 8192"); A("s_cmp_lt_u32 s68, 131072"); A("s_cbranch_scc1 K1_SL1")
    o += lreduce("v_max_f32", T)
    for t in range(7): A(f"v_mov_b32 v{M[t]}, v{LS[t]}")
    for t in range(7): A(f"v_mov_b32 v{LS[t]}, 0")
    for r in range(224): A(f"v_accvgpr_write_b32 a{r}, 0")
    A("s_mov_b32 s68, 0")
    A("K1_SL2:")
    load(SK, DK); kread()
    load(SV, DV)
    for t in range(7):
        qk(t)
        for kt in range(2):
            for r in range(4): A(f"v_sub_f32 v{SB[kt]+r}, v{SB[kt]+r}, v{M[t]}")
            for r in range(4): A(f"v_exp_f32 v{SB[kt]+r}, v{SB[kt]+r}")
            A("s_nop 0")
            for r in range(4): A(f"v_add_f32 v{LS[t]}, v{LS[t]}, v{SB[kt]+r}")
            for i in range(2): A(f"v_cvt_pk_bf16_f32 v{PF[0][t] + kt * 2 + i}, v{SB[kt]+2*i}, v{SB[kt]+2*i+1}")
    A("s_waitcnt vmcnt(0)")
    for dt in range(8):
        for sec in range(2): A(f"ds_read_b64_tr_b16 {vr(VF[0] + sec * 2, 2)}, v{AV[dt]} offset:{sec * 4096}")
        A("s_waitcnt lgkmcnt(0)")
        for t in range(7): A(f"{MF} {ar(OA(dt, t))}, {vr(VF[0])}, {vr(PF[0][t])}, {ar(OA(dt, t))}")
    A("s_add_u32 s68, s68, 8192"); A("s_cmp_lt_u32 s68, 131072"); A("s_cbranch_scc1 K1_SL2")
    A("s_nop 7")
    o += lreduce("v_add_f32", T)
    o += [Ins(f"v_rcp_f32 v{LS[t]}, v{LS[t]}") for t in range(7)]
    for i, b in epi_blocks(): o += b
    A("s_branch K1_DONE")
    return o

def k1():
    main = k1_setup() + qproj()
    for j in range(-1, 15): main += body(j)
    main += final_body()
    main += [Ins("K1_DONE:")] + prof_out(4096, 0, "K1_END")
    main = resolve(link_dmas(main))
    errs = validate(main, "k1")
    sl = slow_path()
    errs += validate(sl, "slow")
    return main + [Ins("K1_END:"), Ins("s_endpgm")] + sl, errs, main

def k2():
    o = []
    A = lambda s: o.append(Ins(s))
    SO, SWW, SOUT = 4, 8, 12
    A("s_cmp_ge_u32 s2, 256"); A("s_cbranch_scc1 K2_END")
    A("s_load_dwordx2 s[20:21], s[0:1], 80")
    A("s_load_dwordx2 s[22:23], s[0:1], 96")
    if PROF:
        A("s_load_dwordx2 s[70:71], s[0:1], 88")
        STAMPS.clear()
    o += stamp("k2_rt0", rt=True) + stamp("k2_start")
    if OPT["cpf"]:
        cpf_setup(o, 5, 6, 0, "K2_END", "K2_BASE")
        o += cpf(5, 7, 0)
    A("v_lshrrev_b32 v3, 6, v0"); A("v_and_b32 v0, 63, v0")
    A("s_and_b32 s24, s2, 7"); A(f"v_readfirstlane_b32 s{S_W}, v3"); A("s_lshr_b32 s25, s2, 3")
    A("s_lshr_b32 s26, s24, 2")
    A("s_and_b32 s24, s24, 3"); A("s_lshl_b32 s24, s24, 2"); A("s_lshr_b32 s27, s25, 3"); A("s_add_u32 s24, s24, s27")
    A("s_and_b32 s25, s25, 7")
    A("v_lshlrev_b32 v2, 4, v0")
    A(f"s_mul_i32 s28, s26, {O_BR}"); A(f"s_mul_i32 s29, s24, {O_MT}"); A("s_add_u32 s28, s28, s29")
    A(f"s_mul_i32 s29, s{S_W}, {2 * O_KS}"); A("s_add_u32 s28, s28, s29")
    A(f"s_mul_i32 s30, s26, {WF_BR}"); A(f"s_mul_i32 s29, s25, {WF_NT}"); A("s_add_u32 s30, s30, s29")
    A(f"s_mul_i32 s29, s{S_W}, {2 * WF_KS}"); A("s_add_u32 s30, s30, s29"); A(f"s_add_u32 s30, s30, {WF_OFF}")
    A("s_waitcnt lgkmcnt(0)")
    mksrd(o, SO, 22, 28, O_MT); mksrd(o, SWW, 22, 30, WF_NT)
    def fr(buf, idx): return vr(8 + buf * 96 + idx * 4) if buf < 2 else ar(140 + idx * 4)
    def OFr(buf, t, s): return fr(buf, s * 7 + t)
    def WFr(buf, ct, s): return fr(buf, 14 + s * 5 + ct)
    def loads(i):
        buf = i % 3
        seq = [("W", 0, 0), ("W", 0, 1)] + [("O", t, s) for t in range(7) for s in range(2)] + [("W", ct, s) for ct in range(1, 5) for s in range(2)]
        res = []
        for kind, a, s in seq:
            if kind == "O": off = i * 8 * O_KS + s * O_KS + a * 1024; dst = OFr(buf, a, s); sr = SO
            else: off = i * 8 * WF_KS + s * WF_KS + a * 1024; dst = WFr(buf, a, s); sr = SWW
            res.append([Ins(f"s_mov_b32 s40, {off}"), Ins(f"buffer_load_dwordx4 {dst}, v2, {srd(sr)}, s40 offen", tag=f"{kind}{i}_{a}")])
        return res
    for l in loads(0): o += l
    A("s_mul_i32 s28, s24, 286720"); A("s_mul_i32 s29, s26, 1280"); A("s_add_u32 s28, s28, s29")
    A("s_mul_i32 s29, s25, 160"); A("s_add_u32 s28, s28, s29")
    mksrd(o, SOUT, 20, 28, "s_sub_u32 s{d}, 4587520, s28")
    if PROF:
        A("s_mov_b32 s74, 0"); mksrd(o, SDB, 70, 74, 0x40000)
    A("v_and_b32 v3, 15, v0"); A("v_mul_u32_u24 v3, 2560, v3"); A("v_lshrrev_b32 v4, 4, v0"); A("v_lshl_add_u32 v3, v4, 3, v3")
    A(f"s_mul_i32 s28, s{S_W}, 35840"); A("v_add_u32 v4, s28, v2")
    A(f"s_lshl_b32 s28, s{S_W}, 10"); A("v_add_u32 v200, s28, v2")
    for sw in range(1, 4): A(f"v_add_u32 v{200 + sw}, {sw * 35840}, v200")
    o += stamp("setup")
    for i in range(16):
        buf = i % 3
        mf, g = [], [[] for _ in range(70)]
        for u in range(70):
            ct, t, s = u // 14, (u % 14) // 2, u % 2
            acc = ar((ct * 7 + t) * 4)
            mf.append(f"{MF} {acc}, {WFr(buf, ct, s)}, {OFr(buf, t, s)}, {acc if (i or s) else 0}")
        o.append(Wait(vm=[f"W{i}_0", f"O{i}_0"]))
        for t in range(1, 7): g[2 * t - 1].append(Wait(vm=f"O{i}_{t}"))
        for ct in range(1, 5): g[14 * ct - 1].append(Wait(vm=f"W{i}_{ct}"))
        if i == 0:
            for k, l in enumerate(loads(1) + loads(2)): g[14 + k] += l
        elif i + 2 < 16:
            for k, l in enumerate(loads(i + 2)): g[2 * k] += l
        o += stream(mf, g)
        o += stamp(f"s{i}")
    A("s_nop 7")
    for q in range(35): o.append(Ins(f"ds_write_b128 v4, {ar(q * 4)} offset:{q * 1024}"))
    A("s_waitcnt lgkmcnt(0)"); A("s_barrier")
    o += stamp("wr")
    for i in range(9):
        for sw in range(4):
            o.append(Ins(f"ds_read_b128 {vr(8 + (i * 4 + sw) * 4)}, v{200 + sw} offset:{i * 4096}", tag=f"R{i}"))
    for i in range(9):
        b = 8 + i * 16
        o.append(Wait(lg=f"R{i}"))
        A(f"s_add_u32 s28, s{S_W}, {4 * i}")
        A("s_mul_i32 s29, s28, 37"); A("s_lshr_b32 s29, s29, 8")
        A("s_mul_i32 s30, s29, 7"); A("s_sub_u32 s30, s28, s30")
        A("s_mul_i32 s30, s30, 40960"); A("s_lshl_b32 s29, s29, 5"); A("s_add_u32 s30, s30, s29")
        A("s_cmp_ge_u32 s28, 35"); A("s_cselect_b32 s30, 0x40000000, s30")
        for r in range(4): A(f"v_add_f32 v{b+r}, v{b+r}, v{b+4+r}")
        for r in range(4): A(f"v_add_f32 v{b+8+r}, v{b+8+r}, v{b+12+r}")
        for r in range(4): A(f"v_add_f32 v{b+r}, v{b+r}, v{b+8+r}")
        A(f"v_cvt_pk_bf16_f32 v{b}, v{b}, v{b+1}"); A(f"v_cvt_pk_bf16_f32 v{b+1}, v{b+2}, v{b+3}")
        o.append(Ins(f"buffer_store_dwordx2 {vr(b, 2)}, v3, {srd(SOUT)}, s30 offen"))
    o += prof_out(4096 + 65536, 2, "K2_END")
    o = resolve(o)
    errs = validate(o, "k2")
    return o + [Ins("K2_END:"), Ins("s_endpgm")], errs, o

def kd(name, vgpr, accum):
    return f""".amdhsa_kernel {name}
  .amdhsa_next_free_vgpr {vgpr}
  .amdhsa_next_free_sgpr 102
  .amdhsa_accum_offset {accum}
  .amdhsa_group_segment_fixed_size 0
  .amdhsa_kernarg_size 104
  .amdhsa_user_sgpr_count 2
  .amdhsa_user_sgpr_kernarg_segment_ptr 1
  .amdhsa_system_sgpr_workgroup_id_x 1
.end_amdhsa_kernel
"""

def build(path):
    STAMPS.clear()
    c1, e1, m1 = k1()
    st1 = list(STAMPS)
    c2, e2, m2 = k2()
    if PROF: json.dump([st1, list(STAMPS)], open(path + ".stamps", "w"))
    for e in (e1 + e2)[:40]: print("ERR", e)
    print(path, "k1 insns", len(c1), "est cycles", estimate(m1), "| k2 insns", len(c2), "est", estimate(m2), "| errors", len(e1) + len(e2))
    s = []
    s.append("; @launch kernel=attn_kernel grid=(256,1,1) block=(256,1,1) lds=163840")
    s.append("; @launch kernel=oproj_kernel grid=(256,1,1) block=(256,1,1) lds=163840")
    s.append('.amdgcn_target "amdgcn-amd-amdhsa--gfx950"')
    s.append(".text")
    for name, code in (("attn_kernel", c1), ("oproj_kernel", c2)):
        s += [f".globl {name}", ".p2align 8", f".type {name},@function", f"{name}:"]
        s += [("" if x.kind == 'label' else "  ") + x.text for x in code]
    s += ['.section .rodata,"a"', ".p2align 6", kd("attn_kernel", 512, 256), ".p2align 6", kd("oproj_kernel", 512, 256)]
    open(path, "w").write("\n".join(s) + "\n")

if __name__ == "__main__":
    args = sys.argv[1:]
    if "--prof" in args: PROF = True
    for a in args:
        if "=" in a:
            k, v = a.split("="); OPT[k] = json.loads(v)
    out = [a for a in args if not a.startswith("--") and "=" not in a]
    build(out[0] if out else "k.s")
```

```python
import struct, sys, json
from ir import *

PROF = False
PROF2 = None
OPT = dict(npf=3, coop=1, k0st=2, cpf=1, xnt=1, dxnt=0, dwnt=0, vpos=[7, 9, 11, 13], kpos=[1, 3, 4, 6])

def f2h(x): return "0x%08x" % struct.unpack("<I", struct.pack("<f", x))[0]

XB = 40960; XSLOT = 28672
WB = 98304; WSLOT = 32768
KSL = [0, 8192, 32768, 40960]
VB0 = 65536
VSL = [32768, 40960, 0, 8192]
SPARE = 131072; SLOWB = 32768
O_BR = 14680064; O_MT = 917504; O_KS = 7168
WF_OFF = 33554432; WF_BR = 5242880; WF_NT = 655360; WF_KS = 5120
CSCALE = 1.4426950408889634 / (128 ** 0.5)
L_LO = 2.0 ** -40; L_HI = 2.0 ** 60

SX, SWQ, SK, SV, SWO, SOW, SWF, SDB = 4, 8, 12, 16, 20, 24, 28, 32
S_W, S_HH, S_HF = 36, 37, 38
S_HP, S_B, S_BR = 39, 43, 3
S_SOFF, S_ST, S_C = 40, 41, 42
S_W1K, S_KW, S_VW, S_WOW = 44, 45, 46, 47
S_PFS, S_PFO, S_W128, S_PWA, S_PWB, S_TMP = 80, 84, 85, 86, 87, 88
S_BAD = 90
AX = [2, 3]; AW = [4, 5, 6, 7]; VX = 8; VW = 9
AK = [10, 11, 12, 13]; AV = list(range(14, 22)); VK = [22, 23]; VV = 24
LS = list(range(25, 32)); PFX, PFW, PFT, PFD = 26, 27, 28, 29
WOV = [2, 3, 4, 5, 6]; AWO = 7; WOSAVE = 224
def blk(t, j): return 32 + 8 * (t * 4 + j)
def QF(t, j): return blk(t, j)
HOLES = [blk(t, j) + 4 for j in range(4) for t in range(7)]
KF = [[HOLES[0 + jj] for jj in range(4)], [HOLES[4 + jj] for jj in range(4)]]
SB = [HOLES[8], HOLES[9]]
PF = [[HOLES[10 + t] for t in range(7)], [HOLES[20 + t] for t in range(7)]]
VF = [HOLES[17], HOLES[18], HOLES[19]]
TMPH = HOLES[27]
def vr(b, n=4): return f"v[{b}:{b+n-1}]"
def ar(b, n=4): return f"a[{b}:{b+n-1}]"
def srd(b): return f"s[{b}:{b+3}]"
def OA(dt, t): return (dt * 7 + t) * 4
def BF(par, t, s): return par * 56 + (t * 2 + s) * 4
def AF(buf, s): return 112 + buf * 8 + s * 4
MF = "v_mfma_f32_16x16x32_bf16"

class Dma(Ins):
    def __init__(self, v, sr, soff, m0s, m0c, imm=0, tag=None, use=None, nt=False):
        txt = f"buffer_load_dwordx4 v{v}, {srd(sr)}, s{S_SOFF} offen" + (f" offset:{imm}" if imm else "") + (" nt" if nt else "") + " lds"
        super().__init__(txt, tag=tag, use=use)
        self.soff, self.m0s, self.m0c = soff, m0s, m0c

def dma_setup(d, prev):
    o = []
    if prev is None or (prev.m0s, prev.m0c) != (d.m0s, d.m0c):
        o.append(Ins(f"s_add_u32 m0, s{d.m0s}, {d.m0c}"))
    if prev is None or prev.soff != d.soff:
        o.append(Ins(f"s_mov_b32 s{S_SOFF}, {d.soff}"))
    return o

def link_dmas(ins):
    ds = [x for x in ins if isinstance(x, Dma)]
    nxt = {id(ds[i]): (ds[i + 1] if i + 1 < len(ds) else None) for i in range(len(ds))}
    out = []
    for i, x in enumerate(ins):
        if x.kind == 'label' and x.text == 'DMA_FIRST:':
            out += dma_setup(ds[0], None) + [Ins("s_nop 0")]
            continue
        out.append(x)
        if isinstance(x, Dma) and nxt[id(x)] is not None:
            su = dma_setup(nxt[id(x)], x)
            out += su
            if su and su[-1].text.startswith("s_add_u32 m0") and ins[i + 1] is nxt[id(x)]:
                out.append(Ins("s_nop 0"))
    return out

def stream(mf, gaps):
    o = []
    for u, m in enumerate(mf):
        o.append(m if isinstance(m, Ins) else Ins(m))
        o += gaps[u]
    return o

def vslots(g):
    n = 2
    for x in g:
        if x.kind in ('dma', 'vst', 'vld', 'trans'): n -= 2
        elif x.kind in ('dsr', 'dsw', 'valu', 'perm'): n -= 1
    return max(n, 0)

def fill(gaps, queue):
    qi = 0
    for u in range(len(gaps)):
        while qi < len(queue) and queue[qi][0] <= u:
            x = queue[qi][1]
            need = 2 if x.kind in ('trans', 'vst') else (1 if x.kind in ('valu', 'perm') else 0)
            if vslots(gaps[u]) < need: break
            gaps[u].append(x); qi += 1
    return [q[1] for q in queue[qi:]]

STAMPS = []
def stamp(name, rt=False):
    if not PROF: return []
    if PROF2 is not None and name not in PROF2: return []
    n = len(STAMPS); STAMPS.append(name)
    assert n < 64
    return [Ins("s_memrealtime s[76:77]" if rt else "s_memtime s[76:77]"), Ins("s_waitcnt lgkmcnt(0)"), Ins(f"v_writelane_b32 v1, s76, {n}")]

def mksrd(o, d, p, offreg, size):
    A = lambda s: o.append(Ins(s))
    A(f"s_add_u32 s{d}, s{p}, s{offreg}")
    A(f"s_addc_u32 s{d+1}, s{p+1}, 0")
    A(f"s_and_b32 s{d+1}, s{d+1}, 0xffff")
    A(f"s_mov_b32 s{d+2}, {size}" if isinstance(size, int) else size.format(d=d + 2))
    A(f"s_mov_b32 s{d+3}, 0x20000")

def dX(c):
    use = f"X{c-2}" if c >= 2 else None
    return [Dma(VX, SX, c * 128 + q * 40960, S_W1K, XB + (c & 1) * XSLOT + q * 4096, tag=f"X{c}", use=use, nt=OPT["dxnt"]) for q in range(7)]
def dW(c):
    use = f"W{c-2}" if c >= 2 else None
    return [Dma(VW, SWQ, c * 524288 + q * 65536, S_W1K, WB + (c & 1) * WSLOT + q * 4096, tag=f"W{c}", use=use, nt=OPT["dwnt"]) for q in range(8)]
def dK(n):
    use = {0: None, 1: None, 2: ["X8"], 3: ["X8"]}.get(n, [f"K{n-4}"])
    return [Dma(VK[e], SK, n * 8192 + hfp * 4096, S_KW, KSL[n & 3] + hfp * 4096, imm=e * 1024, tag=f"K{n}", use=use, nt=True)
            for hfp in range(2) for e in range(2)]
def dV(n):
    use = {0: ["W8"], 1: ["W8"], 2: ["X8", "X9"], 3: ["X9"]}.get(n, [f"V{n-4}"])
    return [Dma(VV, SV, n * 8192 + hfp * 4096, S_VW, VSL[n & 3] + hfp * 4096, imm=e * 2048, tag=f"V{n}", use=use, nt=True)
            for hfp in range(2) for e in range(2)]
def dWO():
    return [Dma(WOV[ii % 5], SWO, (ii // 5) * 40960, S_WOW, ii * 1024, tag="!WO", use=["K12", "K13"]) for ii in range(10)]
def pfX(c0):
    return [Ins(f"s_add_u32 s{S_TMP}, s{S_W128}, {c0 * 128}"), Ins(f"buffer_load_dword v{PFD}, v{PFX}, {srd(SX)}, s{S_TMP} offen" + (" nt" if OPT["xnt"] else ""), tag="PF")]
def pfW(k):
    return [Ins(f"buffer_load_dword v{PFD + 1}, v{PFW}, {srd(SWQ)}, s{S_PWB if k else S_PWA} offen" + (" nt" if OPT["xnt"] else ""), tag="PF")]
def pfKV(k):
    return [Ins(f"s_add_u32 s{S_TMP}, s{S_PFO}, {k * 8192}"), Ins(f"buffer_load_dword v{PFD + 2}, v{PFT}, {srd(S_PFS)}, s{S_TMP} offen nt", tag="PF")]

S_CPF = 96
def cpf_setup(o, v, t, lane, endl, basel):
    A = lambda s: o.append(Ins(s))
    A(f"s_getpc_b64 s[{S_CPF}:{S_CPF+1}]")
    A(f"{basel}:")
    A(f"s_and_b32 s{S_CPF}, s{S_CPF}, 0xfffff000")
    A(f"s_and_b32 s{S_CPF+1}, s{S_CPF+1}, 0xffff")
    A(f"s_mov_b32 s{S_CPF+2}, {endl}-{basel}")
    A(f"s_mov_b32 s{S_CPF+3}, 0x20000")
    A(f"v_lshlrev_b32 v{v}, 7, v{lane}")
def cpf(v, d, k):
    return [Ins(f"s_mov_b32 s{S_TMP}, {k * 32768}"), Ins(f"buffer_load_dword v{d}, v{v}, {srd(S_CPF)}, s{S_TMP} offen", tag="PF")]

def rA(c, dt):
    o = []
    for s in range(2):
        for sec in range(2):
            imm = (c & 1) * WSLOT + s * 16384 + sec * 2048 + (dt & 1) * 8
            o.append(Ins(f"ds_read_b64_tr_b16 {ar(AF(dt & 3, s) + sec * 2, 2)}, v{AW[dt >> 1]} offset:{imm}", tag=f"A{c}_{dt}", use=f"W{c}"))
    return o
def rB(c, t):
    return [Ins(f"ds_read_b128 {ar(BF(c & 1, t, s))}, v{AX[s]} offset:{(c & 1) * XSLOT + t * 2048}", tag=f"B{c}_{t}", use=f"X{c}") for s in range(2)]
def rK(n, kt):
    return [Ins(f"ds_read_b128 {vr(KF[kt][jj])}, v{AK[jj]} offset:{KSL[n & 3] + kt * 4096}", tag=f"KF{n}_{kt}", use=f"K{n}") for jj in range(4)]
def vbuf(n, dt): return VF[(8 * n + dt) % 3]
def rV(n, dt):
    return [Ins(f"ds_read_b64_tr_b16 {vr(vbuf(n, dt) + sec * 2, 2)}, v{AV[dt]} offset:{VSL[n & 3] + sec * 4096}", tag=f"VF{n}_{dt}", use=f"V{n}") for sec in range(2)]

def k1_setup():
    o = []
    A = lambda s: o.append(Ins(s))
    A("s_cmp_ge_u32 s2, 256"); A("s_cbranch_scc1 K1_END")
    A("s_load_dwordx16 s[48:63], s[0:1], 0")
    A("s_load_dwordx8 s[64:71], s[0:1], 64")
    A("s_load_dwordx2 s[72:73], s[0:1], 96")
    o += stamp("k1_rt0", rt=True) + stamp("k1_start")
    if OPT["cpf"]:
        cpf_setup(o, 25, 33, 0, "K1_END", "K1_BASE")
        o += cpf(25, PFD, 0)
    A("v_lshrrev_b32 v32, 6, v0")
    A("v_and_b32 v0, 63, v0")
    A(f"s_and_b32 s{S_HP}, s2, 7")
    A(f"v_readfirstlane_b32 s{S_W}, v32")
    A(f"s_lshr_b32 s{S_B}, s2, 3")
    A(f"s_lshr_b32 s{S_BR}, s{S_HP}, 2")
    A(f"s_and_b32 s{S_HP}, s{S_HP}, 3")
    A(f"s_lshl_b32 s{S_HP}, s{S_HP}, 2")
    A(f"s_and_b32 s74, s{S_B}, 3")
    A(f"s_add_u32 s{S_HP}, s{S_HP}, s74")
    A(f"s_lshr_b32 s{S_B}, s{S_B}, 2")
    A(f"s_lshr_b32 s{S_HH}, s{S_W}, 1")
    A(f"s_and_b32 s{S_HF}, s{S_W}, 1")
    A(f"s_lshl_b32 s{S_W1K}, s{S_W}, 10")
    A(f"s_lshl_b32 s{S_W128}, s{S_W}, 7")
    A(f"s_lshl_b32 s{S_PWA}, s{S_W}, 20"); A(f"s_add_u32 s{S_PWB}, s{S_PWA}, {4 * 524288}")
    A(f"s_cmp_ge_u32 s{S_W}, 2"); A(f"s_cselect_b32 s{S_PWA}, 0x40000000, s{S_PWA}")
    A("s_mul_i32 s74, s74, 56")
    A(f"v_add_u32 v{PFX}, s74, v0"); A(f"v_mul_u32_u24 v{PFX}, 1280, v{PFX}")
    A("v_lshrrev_b32 v32, 5, v0"); A("v_bfe_u32 v33, v0, 2, 3"); A("v_lshl_add_u32 v32, v32, 6, v33")
    A(f"s_lshl_b32 s74, s{S_B}, 3"); A("v_add_u32 v32, s74, v32"); A("v_lshlrev_b32 v32, 13, v32")
    A("v_and_b32 v33, 3, v0"); A(f"v_lshl_add_u32 v{PFW}, v33, 7, v32")
    A("v_lshrrev_b32 v32, 3, v0"); A("v_and_b32 v33, 7, v0"); A("v_lshrrev_b32 v34, 1, v32"); A("v_xor_b32 v33, v33, v34")
    A(f"s_lshl_b32 s74, s{S_HF}, 2"); A("v_xor_b32 v33, s74, v33")
    A(f"s_lshl_b32 s75, s{S_W}, 3"); A("v_add_u32 v32, s75, v32"); A("v_mul_u32_u24 v32, 1280, v32")
    A(f"v_lshl_add_u32 v{VX}, v33, 4, v32")
    A("v_lshrrev_b32 v32, 5, v0"); A("v_and_b32 v33, 31, v0")
    A(f"s_lshl_b32 s74, s{S_HF}, 1"); A("v_add_u32 v34, s74, v32"); A("v_lshlrev_b32 v34, 2, v34"); A("v_xor_b32 v33, v33, v34")
    A(f"s_lshl_b32 s75, s{S_W}, 1"); A("v_add_u32 v32, s75, v32"); A("v_lshlrev_b32 v32, 13, v32")
    A(f"v_lshl_add_u32 v{VW}, v33, 4, v32")
    A(f"s_cmp_eq_u32 s{S_BR}, 0")
    A("s_waitcnt lgkmcnt(0)")
    A("s_cselect_b64 s[48:49], s[48:49], s[58:59]")
    A("s_cselect_b64 s[50:51], s[50:51], s[60:61]")
    A("s_cselect_b64 s[52:53], s[52:53], s[62:63]")
    A("s_cselect_b64 s[54:55], s[54:55], s[64:65]")
    A("s_cselect_b64 s[56:57], s[56:57], s[66:67]")
    A(f"s_mul_i32 s74, s{S_B}, 286720"); mksrd(o, SX, 48, 74, 286720)
    A(f"s_lshl_b32 s74, s{S_HP}, 9"); mksrd(o, SWQ, 54, 74, "s_sub_u32 s{d}, 5242880, s74")
    o += stamp("setupA")
    if OPT["coop"]: o += pfX(0) + pfW(0)
    o.append(Ins("DMA_FIRST:"))
    o += dX(0) + dW(0)
    o += stamp("dma0")
    A(f"s_mul_i32 s74, s{S_HP}, 327680"); A(f"s_mul_i32 s75, s{S_B}, 160"); A("s_add_u32 s74, s74, s75")
    A(f"s_mul_i32 s75, s{S_W}, 81920"); A("s_add_u32 s74, s74, s75")
    mksrd(o, SWO, 56, 74, "s_sub_u32 s{d}, 5242880, s74")
    A(f"s_mul_i32 s{S_WOW}, s{S_W}, 10240"); A(f"s_add_u32 s{S_WOW}, s{S_WOW}, {SPARE}")
    A(f"s_cmp_eq_u32 s{S_W}, 3"); A(f"s_cselect_b32 s{S_WOW}, 0, s{S_WOW}")
    A(f"s_lshl_b32 s74, s{S_HP}, 1"); A(f"s_add_u32 s74, s74, s{S_HH}")
    A(f"s_lshl_b32 s75, s{S_B}, 5"); A("s_add_u32 s75, s75, s74"); A("s_lshl_b32 s75, s75, 17")
    mksrd(o, SK, 50, 75, 131072); mksrd(o, SV, 52, 75, 131072)
    A(f"s_cmp_eq_u32 s{S_HF}, 0")
    A(f"s_cselect_b64 s[{S_PFS}:{S_PFS+1}], s[{SK}:{SK+1}], s[{SV}:{SV+1}]")
    A(f"s_cselect_b32 s{S_PFO}, 16384, 0")
    A(f"s_mov_b32 s{S_PFS+2}, 131072"); A(f"s_mov_b32 s{S_PFS+3}, 0x20000")
    A(f"s_mul_i32 s74, s74, {4 * O_KS}")
    A(f"s_lshl_b32 s75, s{S_B}, 1"); A(f"s_add_u32 s75, s75, s{S_HF}"); A(f"s_mul_i32 s75, s75, {O_MT}")
    A("s_add_u32 s74, s74, s75"); A(f"s_mul_i32 s75, s{S_BR}, {O_BR}"); A("s_add_u32 s74, s74, s75")
    mksrd(o, SOW, 72, 74, 4 * O_KS)
    A(f"s_lshl_b32 s74, s{S_HP}, 3"); A(f"s_lshl_b32 s75, s{S_W}, 1"); A("s_add_u32 s74, s74, s75"); A(f"s_mul_i32 s74, s74, {WF_KS}")
    A(f"s_mul_i32 s75, s{S_B}, {WF_NT}"); A("s_add_u32 s74, s74, s75")
    A(f"s_mul_i32 s75, s{S_BR}, {WF_BR}"); A("s_add_u32 s74, s74, s75"); A(f"s_add_u32 s74, s74, {WF_OFF}")
    mksrd(o, SWF, 72, 74, 2 * WF_KS)
    if PROF:
        A("s_mov_b32 s74, 0"); mksrd(o, SDB, 70, 74, 0x40000)
    A(f"s_lshl_b32 s74, s{S_HH}, 14")
    A(f"s_lshl_b32 s75, s{S_HF}, 11"); A(f"s_add_u32 s{S_KW}, s74, s75")
    A(f"s_lshl_b32 s75, s{S_HF}, 10"); A(f"s_add_u32 s{S_VW}, s74, s75"); A(f"s_add_u32 s{S_VW}, s{S_VW}, {VB0}")
    A(f"s_mov_b32 s{S_C}, {f2h(CSCALE)}")
    A("v_lshrrev_b32 v32, 4, v0"); A("v_and_b32 v33, 15, v0")
    A("v_bfe_u32 v34, v0, 2, 2"); A("v_and_b32 v35, 3, v0")
    A(f"s_mul_i32 s75, s{S_HF}, {112 * 128}"); A(f"s_add_u32 s75, s75, {XB}")
    A("v_lshrrev_b32 v36, 1, v33"); A("v_xor_b32 v36, v36, v32")
    A("v_lshlrev_b32 v37, 7, v33"); A("v_add_u32 v37, s75, v37")
    A(f"v_lshl_add_u32 v{AX[0]}, v36, 4, v37")
    A(f"v_xor_b32 v{AX[1]}, 64, v{AX[0]}")
    A(f"s_lshl_b32 s75, s{S_HH}, 8"); A(f"s_add_u32 s75, s75, {WB}")
    A("v_lshl_add_u32 v36, v32, 3, v34"); A("v_lshlrev_b32 v36, 9, v36")
    A("v_lshl_add_u32 v36, v35, 4, v36"); A("v_add_u32 v36, s75, v36")
    A(f"v_lshl_add_u32 v{AW[0]}, v34, 6, v36")
    for j in range(1, 4): A(f"v_xor_b32 v{AW[j]}, {j * 64}, v{AW[0]}")
    A("v_xor_b32 v36, v32, v33"); A("v_lshlrev_b32 v37, 8, v33"); A("v_add_u32 v37, s74, v37")
    A(f"v_lshl_add_u32 v{AK[0]}, v36, 4, v37")
    for j in range(1, 4): A(f"v_xor_b32 v{AK[j]}, {j * 64}, v{AK[0]}")
    A(f"s_add_u32 s75, s74, {VB0}")
    A("v_lshl_add_u32 v36, v32, 2, v34")
    A("v_and_b32 v37, 7, v36"); A("v_lshlrev_b32 v37, 5, v37")
    A("v_lshl_add_u32 v37, v36, 8, v37"); A("v_lshl_add_u32 v37, v35, 3, v37")
    A(f"v_add_u32 v{AV[0]}, s75, v37")
    for d in range(1, 8): A(f"v_xor_b32 v{AV[d]}, {d * 32}, v{AV[0]}")
    A("v_mul_u32_u24 v37, 160, v36"); A("v_lshl_add_u32 v37, v35, 3, v37"); A(f"v_add_u32 v37, s{S_WOW}, v37")
    A(f"v_accvgpr_write_b32 a{WOSAVE + 5}, v37")
    A("v_xor_b32 v36, v33, v32"); A(f"s_lshl_b32 s75, s{S_HF}, 3"); A("v_xor_b32 v36, s75, v36")
    A("v_lshlrev_b32 v37, 8, v32"); A(f"s_lshl_b32 s75, s{S_HF}, 11"); A("v_add_u32 v37, s75, v37")
    A(f"v_lshl_add_u32 v{VK[0]}, v36, 4, v37"); A(f"v_xor_b32 v{VK[1]}, 64, v{VK[0]}")
    A("v_lshlrev_b32 v36, 1, v32"); A("v_xor_b32 v36, v36, v33"); A(f"s_lshl_b32 s75, s{S_HF}, 3"); A("v_xor_b32 v36, s75, v36")
    A("v_lshlrev_b32 v37, 8, v32"); A(f"s_lshl_b32 s75, s{S_HF}, 10"); A("v_add_u32 v37, s75, v37")
    A(f"v_lshl_add_u32 v{VV}, v36, 4, v37")
    A(f"v_lshlrev_b32 v{PFT}, 7, v0")
    A("s_mov_b32 s74, 6554")
    for ii in range(5): A(f"v_add_u32 v{40+ii}, {64*ii}, v0")
    for ii in range(5): A(f"v_mul_u32_u24 v{48+ii}, s74, v{40+ii}")
    for ii in range(5): A(f"v_lshrrev_b32 v{48+ii}, 16, v{48+ii}")
    for ii in range(5): A(f"v_mul_u32_u24 v{48+ii}, 1120, v{48+ii}")
    for ii in range(5): A(f"v_lshl_add_u32 v{40+ii}, v{40+ii}, 4, v{48+ii}")
    for ii in range(5): A(f"v_accvgpr_write_b32 a{WOSAVE + ii}, v{40+ii}")
    A("v_lshlrev_b32 v0, 4, v0")
    for r in range(32, 144): A(f"v_mov_b32 v{r}, 0")
    o += dX(1) + dW(1)
    for r in range(144, 256): A(f"v_mov_b32 v{r}, 0")
    return o

def conv_block(t, j):
    b = blk(t, j)
    o = [Ins(f"v_mul_f32 v{b+i}, s{S_C}, v{b+i}") for i in range(8)]
    o += [Ins(f"v_cvt_pk_bf16_f32 v{b+i}, v{b+2*i}, v{b+2*i+1}") for i in range(4)]
    return o

def qproj():
    o = []
    o += stamp("setupB") + [Wait(vm=["X0", "W0"]), Ins("s_barrier")] + stamp("first")
    o += rA(0, 0) + [x for t in range(7) for x in rB(0, t)] + rA(0, 1)
    o += [Wait(lg=["A0_0", "B0_0"])]
    carry = []
    for c in range(10):
        mf = []
        for u in range(112):
            dt, t, s = u // 14, (u % 14) // 2, u % 2
            acc = vr(blk(t, dt >> 1) + 4 * (dt & 1))
            mf.append(f"{MF} {acc}, {ar(AF(dt & 3, s))}, {ar(BF(c & 1, t, s))}, {acc}")
        g = [[] for _ in range(112)]
        for t in range(1, 7): g[2 * t - 1].append(Wait(lg=f"B{c}_{t}"))
        for p in range(1, 8):
            if p != 6: g[14 * p - 1].append(Wait(lg=f"A{c}_{p}"))
        for p in range(6):
            for i, x in enumerate(rA(c, p + 2)): g[14 * p + 1 + 2 * i].append(x)
        pos = [0, 2, 4, 6, 8, 9, 10, 11, 12, 22, 24, 26, 36, 38, 40]
        for i, d in enumerate(carry): g[pos[i]] += d
        vm = [f"X{c+1}", f"W{c+1}"] if c < 9 else ["K0"]
        if PROF: g[83] += [Wait(lg=f"A{c}_7")] + stamp(f"q{c}a") + [Wait(vm=vm), Ins("s_barrier")] + stamp(f"q{c}b")
        else: g[83] += [Wait(lg=f"A{c}_7", vm=vm), Ins("s_barrier")]
        if c <= 7: nd = dX(c + 2) + dW(c + 2)
        if c == 8: nd = dV(0) + dK(2) + dV(1)
        if c == 9: nd = dK(3)
        if c == OPT["k0st"]: nd += dK(0)
        if c == OPT["k0st"] + 1: nd += dK(1)
        nd = [[d] for d in nd]
        if OPT["coop"]:
            if c == 0: nd.append(pfX(4))
            if c == 1: nd.append(pfW(1))
            if c == 2: nd.insert(15, pfX(8))
        p0 = OPT["k0st"] + 2
        if p0 <= c < p0 + OPT["npf"]: nd.append(pfKV(c - p0))
        dpos = [84, 89, 94, 99, 104, 109]
        for i, d in enumerate(nd[:6]): g[dpos[i]] += d
        carry = nd[6:]
        if c < 9:
            rd = rA(c + 1, 0) + [x for t in range(7) for x in rB(c + 1, t)] + rA(c + 1, 1)
            rp = [u for u in range(84, 112) if u not in dpos]
            for u, x in zip(rp, rd): g[u].append(x)
            g[111].insert(0, Wait(lg=[f"A{c+1}_0", f"B{c+1}_0"]))
        tail = []
        if c == 9:
            for i, x in enumerate(rK(0, 0)): g[100 + 2 * i + 1].append(x)
            q = []
            for j in range(4):
                for t in range(7):
                    e = (2 * j + 1) * 14 + 2 * t + 1 + 8
                    q += [(e, x) for x in conv_block(t, j)]
            left = fill(g, q)
            tail = [Ins("s_nop 7")] + left
        o += stream(mf, g) + tail
    o += [Ins("v_mov_b32 v9, v25"), Wait(lg="KF0_0", vm="PF" if (OPT["coop"] or OPT["npf"] or OPT["cpf"]) else ())] + stamp("qend")
    return o

def softmax_ops(n, kt, t, sb):
    e = [Ins(f"v_exp_f32 v{sb+r}, v{sb+r}") for r in range(4)]
    first = (n == 0 and kt == 0)
    a = [Ins(f"v_mov_b32 v{LS[t]}, v{sb}") if (first and r == 0) else Ins(f"v_add_f32 v{LS[t]}, v{LS[t]}, v{sb+r}") for r in range(4)]
    p = PF[n & 1][t] + kt * 2
    c = [Ins(f"v_cvt_pk_bf16_f32 v{p+i}, v{sb+2*i}, v{sb+2*i+1}") for i in range(2)]
    return e, a, c

def body(j):
    hasPV = j >= 0
    o = []
    ds = {g: [] for g in range(14)}
    if hasPV:
        for g, dt in ((0, 1), (2, 2), (3, 3), (5, 4), (6, 5), (8, 6), (10, 7)): ds[g] = rV(j, dt)
    k1 = rK(j + 1, 1); ds[1] = k1[:2]; ds[4] = k1[2:]
    if j + 2 <= 15:
        k0 = rK(j + 2, 0); ds[7] = k0[:2]; ds[9] = k0[2:]
    ds[12] = rV(j + 1, 0)
    dm = {g: [] for g in range(14)}
    if j + 3 <= 15:
        for g, d in zip(OPT["vpos"], dV(j + 3)): dm[g].append(d)
    if 4 <= j + 4 <= 15 and j >= 0:
        for g, d in zip(OPT["kpos"], dK(j + 4)): dm[g].append(d)
    extra = {g: [] for g in range(14)}
    if j == 12:
        extra[11] = [Ins(f"v_accvgpr_read_b32 v{WOV[i]}, a{WOSAVE + i}") for i in range(5)] + [Ins(f"v_accvgpr_read_b32 v{AWO}, a{WOSAVE + 5}")]
    if j == 13:
        for g, d in zip([0, 1, 2, 4, 5, 7, 9, 11, 11, 13], dWO()): dm[g].append(d)
    if OPT["cpf"] and j in (0, 9): dm[11] += cpf(9, 8, 1 if j == 0 else 2)
    for g in range(14):
        mf, gaps = [], []
        kt, t = g // 7, g % 7
        pg, pn = (g - 1, j + 1) if g > 0 else (13, j)
        e, a, c = softmax_ops(pn, pg // 7, pg % 7, SB[pg & 1]) if pn >= 0 else ([], [], [])
        sb = vr(SB[g & 1])
        for jj in range(4):
            mf.append(f"{MF} {sb}, {vr(KF[kt][jj])}, {vr(QF(t, jj))}, {sb if jj else 0}")
            gaps.append([e[jj]] if e else [])
        d = list(ds[g]); mydm = dm[g]
        if hasPV:
            for i in range(4):
                p = 4 * g + i
                dt, tt = p // 7, p % 7
                oa = ar(OA(dt, tt))
                mf.append(f"{MF} {oa}, {vr(vbuf(j, dt))}, {vr(PF[j & 1][tt])}, {oa if j > 0 else 0}")
            if d:
                pv = [[d[0]] + a[0:1], c[0:1] + a[1:2], [d[1]] + a[2:3], mydm + c[1:2] + a[3:4]]
            else:
                pv = [a[0:1] + c[0:1], mydm[1:] + a[1:2] + c[1:2], a[2:4], mydm[:1]]
            pv[2] += extra[g]
            gaps += pv
            for i in range(4):
                p = 4 * g + i + 1
                if p % 7 == 0 and p < 56 and i < 3: gaps[4 + i].insert(0, Wait(lg=f"VF{j}_{p // 7}"))
            if (4 * g) % 7 == 0: gaps[3].insert(0, Wait(lg=f"VF{j}_{4 * g // 7}"))
        else:
            gaps[-1] += a + c
            if g == 0: gaps[-1].append(Ins("s_nop 5"))
            gaps[0] = d + mydm + gaps[0]
        if g == 6:
            vm = ([f"K{j+2}"] if j + 2 <= 15 else []) + [f"V{j+1}"]
            gaps[-1] += [Wait(lg=f"KF{j+1}_1", vm=vm), Ins("s_barrier")] + stamp(f"P{j}")
        if g == 13:
            gaps[-1].insert(0, Wait(lg=f"KF{j+2}_0" if j + 2 <= 15 else "VF15_0"))
        o += stream(mf, gaps)
    return o

def lreduce(op, T):
    o = []
    for sw in ("v_permlane32_swap_b32", "v_permlane16_swap_b32"):
        o += [Ins(f"v_mov_b32 v{T[t]}, v{LS[t]}") for t in range(7)]
        o += [Ins("s_nop 0")]
        o += [Ins(f"{sw} v{LS[t]}, v{T[t]}") for t in range(7)]
        o += [Ins(f"{op} v{LS[t]}, v{LS[t]}, v{T[t]}") for t in range(7)]
    return o

def check():
    o = []
    A = lambda s: o.append(Ins(s))
    A(f"v_min3_u32 v3, v{LS[0]}, v{LS[1]}, v{LS[2]}"); A(f"v_max3_u32 v2, v{LS[0]}, v{LS[1]}, v{LS[2]}")
    A(f"v_min3_u32 v3, v3, v{LS[3]}, v{LS[4]}"); A(f"v_max3_u32 v2, v2, v{LS[3]}, v{LS[4]}")
    A(f"v_min3_u32 v3, v3, v{LS[5]}, v{LS[6]}"); A(f"v_max3_u32 v2, v2, v{LS[5]}, v{LS[6]}")
    A(f"s_mov_b32 s74, {f2h(L_HI)}")
    A(f"v_cmp_gt_u32 vcc, {f2h(L_LO)}, v3")
    A(f"v_cmp_lt_u32 s[{S_BAD}:{S_BAD+1}], s74, v2")
    return o

def epi_block(i, t, h0, h1, pk):
    o = []
    for r in range(4): o.append(Ins(f"v_accvgpr_read_b32 v{h0+r}, a{OA(2*i, t)+r}"))
    for r in range(4): o.append(Ins(f"v_accvgpr_read_b32 v{h1+r}, a{OA(2*i+1, t)+r}"))
    for h in (h0, h1):
        for r in range(4): o.append(Ins(f"v_mul_f32 v{h+r}, v{LS[t]}, v{h+r}"))
    o.append(Ins(f"v_cvt_pk_bf16_f32 v{h0}, v{h0}, v{h0+1}")); o.append(Ins(f"v_cvt_pk_bf16_f32 v{h0+1}, v{h0+2}, v{h0+3}"))
    o.append(Ins(f"v_cvt_pk_bf16_f32 v{h0+2}, v{h1}, v{h1+1}")); o.append(Ins(f"v_cvt_pk_bf16_f32 v{h0+3}, v{h1+2}, v{h1+3}"))
    if t % 4 == 0: o.append(Ins(f"s_mov_b32 s{S_ST}, {i * O_KS + t * 1024}"))
    o.append(Ins(f"buffer_store_dwordx4 {vr(h0)}, v0, {srd(SOW)}, s{S_ST} offen" + (f" offset:{(t % 4) * 1024}" if t % 4 else ""), tag=f"OST{i}"))
    return o

EPT = [PF[0][4], PF[0][5], PF[0][6], TMPH, SB[0], SB[1]]
def epi_blocks():
    res = []; k = 0
    for i in range(4):
        for t in range(7):
            res.append((i, epi_block(i, t, EPT[(2 * k) % 6], EPT[(2 * k + 1) % 6], False))); k += 1
    return res

def final_body():
    j = 15
    o = []
    e, a, c = softmax_ops(15, 1, 6, SB[1])
    o += e[:2]
    mf = []
    for p in range(56):
        dt, tt = p // 7, p % 7
        oa = ar(OA(dt, tt))
        mf.append(f"{MF} {oa}, {vr(vbuf(j, dt))}, {vr(PF[j & 1][tt])}, {oa}")
    g = [[] for _ in range(56)]
    for gg, dt in ((0, 1), (2, 2), (3, 3), (5, 4), (6, 5), (8, 6), (10, 7)):
        r = rV(j, dt); g[4 * gg].append(r[0]); g[4 * gg + 2].append(r[1])
    g[0].append(c[0]); g[1].append(e[2]); g[2].append(a[0]); g[3].append(e[3]); g[4] += [a[1], c[1]]; g[5] += [a[2], a[3]]
    for dt in range(1, 8): g[7 * dt - 1].insert(0, Wait(lg=f"VF15_{dt}"))
    WOF = [KF[0][0], KF[0][1], KF[0][2], KF[0][3], KF[1][0], KF[1][1], KF[1][2], KF[1][3], PF[0][0], PF[0][1]]
    g[5].insert(0, Wait(vm="!WO"))
    rp = [6, 7, 9, 11, 13, 15, 16, 17, 18, 19, 21, 23, 25, 27, 28, 29, 30, 31, 33, 35]
    for k, u in enumerate(rp):
        f, sec = k // 2, k % 2
        ks, ct = f // 5, f % 5
        g[u].append(Ins(f"ds_read_b64_tr_b16 {vr(WOF[f] + sec * 2, 2)}, v{AWO} offset:{ks * 5120 + sec * 2560 + ct * 32}", tag=f"WOF{f}", use="!WO"))
    sp = [36, 37, 38, 39, 41, 43, 44, 45, 46, 47]
    for f, u in enumerate(sp):
        g[u - 1].insert(0, Wait(lg=f"WOF{f}"))
        if f % 4 == 0: g[u - 1].append(Ins(f"s_mov_b32 s{S_TMP}, {f * 1024}"))
        g[u].append(Ins(f"buffer_store_dwordx4 {vr(WOF[f])}, v0, {srd(SWF)}, s{S_TMP} offen" + (f" offset:{(f % 4) * 1024}" if f % 4 else ""), tag="WOST"))
    T = [PF[0][2] + i for i in range(4)] + [PF[0][3] + i for i in range(4)]
    q = [(6, x) for x in lreduce("v_add_f32", T) + check() + [Ins(f"v_rcp_f32 v{LS[t]}, v{LS[t]}") for t in range(7)]]
    for i, b in epi_blocks(): q += [(14 * i + 13 + 6, x) for x in b]
    left = fill(g, q)
    o += stream(mf, g)
    o += stamp("attend")
    k = max([i + 1 for i, x in enumerate(left) if x.text.startswith("v_cmp_lt_u32")] + [0])
    o += left[:k] + [Ins("s_nop 1"), Ins(f"s_or_b64 s[{S_BAD}:{S_BAD+1}], vcc, s[{S_BAD}:{S_BAD+1}]"), Ins("s_cbranch_scc1 K1_SLOW")]
    o += left[k:]
    return o

def prof_out(base, lane16, endl):
    if not PROF: return []
    o = stamp("issued") + [Ins("s_waitcnt vmcnt(0)")] + stamp("end") + stamp("rt1", rt=True)
    A = lambda s: o.append(Ins(s))
    A(f"s_cmp_lg_u32 s{S_W}, 0"); A(f"s_cbranch_scc1 {endl}")
    if PROF2 is not None:
        A(f"s_cmp_lg_u32 s2, {OPT.get('pwg', 0)}"); A(f"s_cbranch_scc1 {endl}")
        k2 = base > 4096
        if k2:
            A(f"s_sub_u32 s{SDB}, s{SDB}, 512"); A(f"s_subb_u32 s{SDB+1}, s{SDB+1}, 0")
        A(f"s_mov_b32 s{SDB+2}, {64 if k2 else 44}")
        A(f"v_lshrrev_b32 v39, 2, v{lane16}")
        A(f"buffer_store_dword v1, v39, {srd(SDB)}, 0 offen" + (" offset:44" if k2 else ""))
        return o
    A("s_lshl_b32 s74, s2, 8"); A(f"s_add_u32 s74, s74, {base}")
    A(f"v_lshrrev_b32 v39, 2, v{lane16}"); A("v_add_u32 v39, s74, v39")
    A(f"buffer_store_dword v1, v39, {srd(SDB)}, 0 offen")
    return o

def slow_path():
    o = [Ins("K1_SLOW:")]
    A = lambda s: o.append(Ins(s))
    M = list(range(2, 9))
    T = [KF[0][0] + i for i in range(4)] + [KF[0][1] + i for i in range(4)]
    DK = [PF[1][0] + i for i in range(4)]; DV = [PF[1][1], PF[1][1] + 1]; G, N = PF[1][1] + 2, PF[1][1] + 3
    A("s_waitcnt vmcnt(0) lgkmcnt(0)")
    A("s_nop 7")
    A(f"s_lshl_b32 s74, s{S_W}, 13"); A(f"s_add_u32 s74, s74, {SLOWB}")
    A(f"s_lshl_b32 s75, s{S_HH}, 14"); A("s_sub_u32 s66, s74, s75"); A(f"s_sub_u32 s67, s66, {VB0}")
    for r in AK: A(f"v_add_u32 v{r}, s66, v{r}")
    for r in AV: A(f"v_add_u32 v{r}, s67, v{r}")
    A(f"v_lshrrev_b32 v{G}, 8, v0")
    A(f"v_bfe_u32 v{N}, v0, 4, 4")
    A(f"v_xor_b32 v{DK[0]}, v{G}, v{N}"); A(f"v_lshlrev_b32 v{DK[0]}, 4, v{DK[0]}"); A(f"v_lshl_add_u32 v{DK[0]}, v{G}, 8, v{DK[0]}")
    for e in range(1, 4): A(f"v_xor_b32 v{DK[e]}, {64 * e}, v{DK[0]}")
    A(f"v_lshlrev_b32 v{DV[0]}, 1, v{G}"); A(f"v_xor_b32 v{DV[0]}, v{DV[0]}, v{N}"); A(f"v_lshlrev_b32 v{DV[0]}, 4, v{DV[0]}")
    A(f"v_lshl_add_u32 v{DV[0]}, v{G}, 8, v{DV[0]}"); A(f"v_xor_b32 v{DV[1]}, 128, v{DV[0]}")
    A("s_add_u32 s75, s74, 4096")
    def load(sr, regs):
        A("s_mov_b32 m0, s74"); A("s_nop 0")
        for i in range(4): A(f"buffer_load_dwordx4 v{regs[i % len(regs)]}, {srd(sr)}, s68 offen offset:{i * 1024} lds")
        A("s_mov_b32 m0, s75"); A("s_add_u32 s69, s68, 4096")
        for i in range(4): A(f"buffer_load_dwordx4 v{regs[i % len(regs)]}, {srd(sr)}, s69 offen offset:{i * 1024} lds")
    def kread():
        A("s_waitcnt vmcnt(0)")
        for kt in range(2):
            for jj in range(4): A(f"ds_read_b128 {vr(KF[kt][jj])}, v{AK[jj]} offset:{kt * 4096}")
        A("s_waitcnt lgkmcnt(0)")
    def qk(t):
        for kt in range(2):
            sb = vr(SB[kt])
            for jj in range(4): A(f"{MF} {sb}, {vr(KF[kt][jj])}, {vr(QF(t, jj))}, {sb if jj else 0}")
        A("s_nop 7")
    for t in range(7): A(f"v_mov_b32 v{LS[t]}, 0xff800000")
    A("s_mov_b32 s68, 0")
    A("K1_SL1:")
    load(SK, DK); kread()
    for t in range(7):
        qk(t)
        for kt in range(2):
            A(f"v_max3_f32 v{LS[t]}, v{LS[t]}, v{SB[kt]}, v{SB[kt]+1}"); A(f"v_max3_f32 v{LS[t]}, v{LS[t]}, v{SB[kt]+2}, v{SB[kt]+3}")
    A("s_add_u32 s68, s68, 8192"); A("s_cmp_lt_u32 s68, 131072"); A("s_cbranch_scc1 K1_SL1")
    o += lreduce("v_max_f32", T)
    for t in range(7): A(f"v_mov_b32 v{M[t]}, v{LS[t]}")
    for t in range(7): A(f"v_mov_b32 v{LS[t]}, 0")
    for r in range(224): A(f"v_accvgpr_write_b32 a{r}, 0")
    A("s_mov_b32 s68, 0")
    A("K1_SL2:")
    load(SK, DK); kread()
    load(SV, DV)
    for t in range(7):
        qk(t)
        for kt in range(2):
            for r in range(4): A(f"v_sub_f32 v{SB[kt]+r}, v{SB[kt]+r}, v{M[t]}")
            for r in range(4): A(f"v_exp_f32 v{SB[kt]+r}, v{SB[kt]+r}")
            A("s_nop 0")
            for r in range(4): A(f"v_add_f32 v{LS[t]}, v{LS[t]}, v{SB[kt]+r}")
            for i in range(2): A(f"v_cvt_pk_bf16_f32 v{PF[0][t] + kt * 2 + i}, v{SB[kt]+2*i}, v{SB[kt]+2*i+1}")
    A("s_waitcnt vmcnt(0)")
    for dt in range(8):
        for sec in range(2): A(f"ds_read_b64_tr_b16 {vr(VF[0] + sec * 2, 2)}, v{AV[dt]} offset:{sec * 4096}")
        A("s_waitcnt lgkmcnt(0)")
        for t in range(7): A(f"{MF} {ar(OA(dt, t))}, {vr(VF[0])}, {vr(PF[0][t])}, {ar(OA(dt, t))}")
    A("s_add_u32 s68, s68, 8192"); A("s_cmp_lt_u32 s68, 131072"); A("s_cbranch_scc1 K1_SL2")
    A("s_nop 7")
    o += lreduce("v_add_f32", T)
    o += [Ins(f"v_rcp_f32 v{LS[t]}, v{LS[t]}") for t in range(7)]
    for i, b in epi_blocks(): o += b
    A("s_branch K1_DONE")
    return o

def k1():
    main = k1_setup() + qproj()
    for j in range(-1, 15): main += body(j)
    main += final_body()
    main += [Ins("K1_DONE:")] + prof_out(4096, 0, "K1_END")
    main = resolve(link_dmas(main))
    errs = validate(main, "k1")
    sl = slow_path()
    errs += validate(sl, "slow")
    return main + [Ins("K1_END:"), Ins("s_endpgm")] + sl, errs, main

def k2():
    o = []
    A = lambda s: o.append(Ins(s))
    SO, SWW, SOUT = 4, 8, 12
    A("s_cmp_ge_u32 s2, 256"); A("s_cbranch_scc1 K2_END")
    A("s_load_dwordx2 s[20:21], s[0:1], 80")
    A("s_load_dwordx2 s[22:23], s[0:1], 96")
    if PROF:
        A("s_load_dwordx2 s[70:71], s[0:1], 88")
        STAMPS.clear()
    o += stamp("k2_rt0", rt=True) + stamp("k2_start")
    if OPT["cpf"]:
        cpf_setup(o, 5, 6, 0, "K2_END", "K2_BASE")
        o += cpf(5, 7, 0)
    A("v_lshrrev_b32 v3, 6, v0"); A("v_and_b32 v0, 63, v0")
    A("s_and_b32 s24, s2, 7"); A(f"v_readfirstlane_b32 s{S_W}, v3"); A("s_lshr_b32 s25, s2, 3")
    A("s_lshr_b32 s26, s24, 2")
    A("s_and_b32 s24, s24, 3"); A("s_lshl_b32 s24, s24, 2"); A("s_lshr_b32 s27, s25, 3"); A("s_add_u32 s24, s24, s27")
    A("s_and_b32 s25, s25, 7")
    A("v_lshlrev_b32 v2, 4, v0")
    A(f"s_mul_i32 s28, s26, {O_BR}"); A(f"s_mul_i32 s29, s24, {O_MT}"); A("s_add_u32 s28, s28, s29")
    A(f"s_mul_i32 s29, s{S_W}, {2 * O_KS}"); A("s_add_u32 s28, s28, s29")
    A(f"s_mul_i32 s30, s26, {WF_BR}"); A(f"s_mul_i32 s29, s25, {WF_NT}"); A("s_add_u32 s30, s30, s29")
    A(f"s_mul_i32 s29, s{S_W}, {2 * WF_KS}"); A("s_add_u32 s30, s30, s29"); A(f"s_add_u32 s30, s30, {WF_OFF}")
    A("s_waitcnt lgkmcnt(0)")
    mksrd(o, SO, 22, 28, O_MT); mksrd(o, SWW, 22, 30, WF_NT)
    def fr(buf, idx): return vr(8 + buf * 96 + idx * 4) if buf < 2 else ar(140 + idx * 4)
    def OFr(buf, t, s): return fr(buf, s * 7 + t)
    def WFr(buf, ct, s): return fr(buf, 14 + s * 5 + ct)
    def loads(i):
        buf = i % 3
        seq = [("W", 0, 0), ("W", 0, 1)] + [("O", t, s) for t in range(7) for s in range(2)] + [("W", ct, s) for ct in range(1, 5) for s in range(2)]
        res = []
        for kind, a, s in seq:
            if kind == "O": off = i * 8 * O_KS + s * O_KS + a * 1024; dst = OFr(buf, a, s); sr = SO
            else: off = i * 8 * WF_KS + s * WF_KS + a * 1024; dst = WFr(buf, a, s); sr = SWW
            res.append([Ins(f"s_mov_b32 s40, {off}"), Ins(f"buffer_load_dwordx4 {dst}, v2, {srd(sr)}, s40 offen", tag=f"{kind}{i}_{a}")])
        return res
    for l in loads(0): o += l
    A("s_mul_i32 s28, s24, 286720"); A("s_mul_i32 s29, s26, 1280"); A("s_add_u32 s28, s28, s29")
    A("s_mul_i32 s29, s25, 160"); A("s_add_u32 s28, s28, s29")
    mksrd(o, SOUT, 20, 28, "s_sub_u32 s{d}, 4587520, s28")
    if PROF:
        A("s_mov_b32 s74, 0"); mksrd(o, SDB, 70, 74, 0x40000)
    A("v_and_b32 v3, 15, v0"); A("v_mul_u32_u24 v3, 2560, v3"); A("v_lshrrev_b32 v4, 4, v0"); A("v_lshl_add_u32 v3, v4, 3, v3")
    A(f"s_mul_i32 s28, s{S_W}, 35840"); A("v_add_u32 v4, s28, v2")
    A(f"s_lshl_b32 s28, s{S_W}, 10"); A("v_add_u32 v200, s28, v2")
    for sw in range(1, 4): A(f"v_add_u32 v{200 + sw}, {sw * 35840}, v200")
    o += stamp("setup")
    for i in range(16):
        buf = i % 3
        mf, g = [], [[] for _ in range(70)]
        for u in range(70):
            ct, t, s = u // 14, (u % 14) // 2, u % 2
            acc = ar((ct * 7 + t) * 4)
            mf.append(f"{MF} {acc}, {WFr(buf, ct, s)}, {OFr(buf, t, s)}, {acc if (i or s) else 0}")
        o.append(Wait(vm=[f"W{i}_0", f"O{i}_0"]))
        for t in range(1, 7): g[2 * t - 1].append(Wait(vm=f"O{i}_{t}"))
        for ct in range(1, 5): g[14 * ct - 1].append(Wait(vm=f"W{i}_{ct}"))
        if i == 0:
            for k, l in enumerate(loads(1) + loads(2)): g[14 + k] += l
        elif i + 2 < 16:
            for k, l in enumerate(loads(i + 2)): g[2 * k] += l
        o += stream(mf, g)
        o += stamp(f"s{i}")
    A("s_nop 7")
    for q in range(35): o.append(Ins(f"ds_write_b128 v4, {ar(q * 4)} offset:{q * 1024}"))
    A("s_waitcnt lgkmcnt(0)"); A("s_barrier")
    o += stamp("wr")
    for i in range(9):
        for sw in range(4):
            o.append(Ins(f"ds_read_b128 {vr(8 + (i * 4 + sw) * 4)}, v{200 + sw} offset:{i * 4096}", tag=f"R{i}"))
    for i in range(9):
        b = 8 + i * 16
        o.append(Wait(lg=f"R{i}"))
        A(f"s_add_u32 s28, s{S_W}, {4 * i}")
        A("s_mul_i32 s29, s28, 37"); A("s_lshr_b32 s29, s29, 8")
        A("s_mul_i32 s30, s29, 7"); A("s_sub_u32 s30, s28, s30")
        A("s_mul_i32 s30, s30, 40960"); A("s_lshl_b32 s29, s29, 5"); A("s_add_u32 s30, s30, s29")
        A("s_cmp_ge_u32 s28, 35"); A("s_cselect_b32 s30, 0x40000000, s30")
        for r in range(4): A(f"v_add_f32 v{b+r}, v{b+r}, v{b+4+r}")
        for r in range(4): A(f"v_add_f32 v{b+8+r}, v{b+8+r}, v{b+12+r}")
        for r in range(4): A(f"v_add_f32 v{b+r}, v{b+r}, v{b+8+r}")
        A(f"v_cvt_pk_bf16_f32 v{b}, v{b}, v{b+1}"); A(f"v_cvt_pk_bf16_f32 v{b+1}, v{b+2}, v{b+3}")
        o.append(Ins(f"buffer_store_dwordx2 {vr(b, 2)}, v3, {srd(SOUT)}, s30 offen"))
    o += prof_out(4096 + 65536, 2, "K2_END")
    o = resolve(o)
    errs = validate(o, "k2")
    return o + [Ins("K2_END:"), Ins("s_endpgm")], errs, o

def kd(name, vgpr, accum):
    return f""".amdhsa_kernel {name}
  .amdhsa_next_free_vgpr {vgpr}
  .amdhsa_next_free_sgpr 102
  .amdhsa_accum_offset {accum}
  .amdhsa_group_segment_fixed_size 0
  .amdhsa_kernarg_size 104
  .amdhsa_user_sgpr_count 2
  .amdhsa_user_sgpr_kernarg_segment_ptr 1
  .amdhsa_system_sgpr_workgroup_id_x 1
.end_amdhsa_kernel
"""

def build(path):
    STAMPS.clear()
    c1, e1, m1 = k1()
    st1 = list(STAMPS)
    c2, e2, m2 = k2()
    if PROF: json.dump([st1, list(STAMPS)], open(path + ".stamps", "w"))
    for e in (e1 + e2)[:40]: print("ERR", e)
    print(path, "k1 insns", len(c1), "est cycles", estimate(m1), "| k2 insns", len(c2), "est", estimate(m2), "| errors", len(e1) + len(e2))
    s = []
    s.append("; @launch kernel=attn_kernel grid=(256,1,1) block=(256,1,1) lds=163840")
    s.append("; @launch kernel=oproj_kernel grid=(256,1,1) block=(256,1,1) lds=163840")
    s.append('.amdgcn_target "amdgcn-amd-amdhsa--gfx950"')
    s.append(".text")
    for name, code in (("attn_kernel", c1), ("oproj_kernel", c2)):
        s += [f".globl {name}", ".p2align 8", f".type {name},@function", f"{name}:"]
        s += [("" if x.kind == 'label' else "  ") + x.text for x in code]
    s += ['.section .rodata,"a"', ".p2align 6", kd("attn_kernel", 512, 256), ".p2align 6", kd("oproj_kernel", 512, 256)]
    open(path, "w").write("\n".join(s) + "\n")

if __name__ == "__main__":
    args = sys.argv[1:]
    if "--prof" in args: PROF = True
    if "--prof2" in args:
        PROF = True; PROF2 = ["k1_rt0", "k1_start", "first", "q4b", "qend", "P3", "P9", "attend", "issued", "end", "rt1", "k2_rt0", "k2_start"]
    for a in args:
        if "=" in a:
            k, v = a.split("="); OPT[k] = json.loads(v)
    out = [a for a in args if not a.startswith("--") and "=" not in a]
    build(out[0] if out else "k.s")
```

```python
import struct, sys, json
from ir import *

PROF = False
PROF2 = None
OPT = dict(npf=3, coop=1, k0st=2, cpf=1, xnt=1, dxnt=0, dwnt=0, vpos=[7, 9, 11, 13], kpos=[1, 3, 4, 6])

def f2h(x): return "0x%08x" % struct.unpack("<I", struct.pack("<f", x))[0]

XB = 40960; XSLOT = 28672
WB = 98304; WSLOT = 32768
KSL = [0, 8192, 32768, 40960]
VB0 = 65536
VSL = [32768, 40960, 0, 8192]
SPARE = 131072; SLOWB = 32768
O_BR = 14680064; O_MT = 917504; O_KS = 7168
WF_OFF = 33554432; WF_BR = 5242880; WF_NT = 655360; WF_KS = 5120
CSCALE = 1.4426950408889634 / (128 ** 0.5)
L_LO = 2.0 ** -40; L_HI = 2.0 ** 60

SX, SWQ, SK, SV, SWO, SOW, SWF, SDB = 4, 8, 12, 16, 20, 24, 28, 32
S_W, S_HH, S_HF = 36, 37, 38
S_HP, S_B, S_BR = 39, 43, 3
S_SOFF, S_ST, S_C = 40, 41, 42
S_W1K, S_KW, S_VW, S_WOW = 44, 45, 46, 47
S_PFS, S_PFO, S_W128, S_PWA, S_PWB, S_TMP = 80, 84, 85, 86, 87, 88
S_BAD = 90
AX = [2, 3]; AW = [4, 5, 6, 7]; VX = 8; VW = 9
AK = [10, 11, 12, 13]; AV = list(range(14, 22)); VK = [22, 23]; VV = 24
LS = list(range(25, 32)); PFX, PFW, PFT, PFD = 26, 27, 28, 29
WOV = [2, 3, 4, 5, 6]; AWO = 7; WOSAVE = 224
def blk(t, j): return 32 + 8 * (t * 4 + j)
def QF(t, j): return blk(t, j)
HOLES = [blk(t, j) + 4 for j in range(4) for t in range(7)]
KF = [[HOLES[0 + jj] for jj in range(4)], [HOLES[4 + jj] for jj in range(4)]]
SB = [HOLES[8], HOLES[9]]
PF = [[HOLES[10 + t] for t in range(7)], [HOLES[20 + t] for t in range(7)]]
VF = [HOLES[17], HOLES[18], HOLES[19]]
TMPH = HOLES[27]
def vr(b, n=4): return f"v[{b}:{b+n-1}]"
def ar(b, n=4): return f"a[{b}:{b+n-1}]"
def srd(b): return f"s[{b}:{b+3}]"
def OA(dt, t): return (dt * 7 + t) * 4
def BF(par, t, s): return par * 56 + (t * 2 + s) * 4
def AF(buf, s): return 112 + buf * 8 + s * 4
MF = "v_mfma_f32_16x16x32_bf16"

class Dma(Ins):
    def __init__(self, v, sr, soff, m0s, m0c, imm=0, tag=None, use=None, nt=False):
        txt = f"buffer_load_dwordx4 v{v}, {srd(sr)}, s{S_SOFF} offen" + (f" offset:{imm}" if imm else "") + (" nt" if nt else "") + " lds"
        super().__init__(txt, tag=tag, use=use)
        self.soff, self.m0s, self.m0c = soff, m0s, m0c

def dma_setup(d, prev):
    o = []
    if prev is None or (prev.m0s, prev.m0c) != (d.m0s, d.m0c):
        o.append(Ins(f"s_add_u32 m0, s{d.m0s}, {d.m0c}"))
    if prev is None or prev.soff != d.soff:
        o.append(Ins(f"s_mov_b32 s{S_SOFF}, {d.soff}"))
    return o

def link_dmas(ins):
    ds = [x for x in ins if isinstance(x, Dma)]
    nxt = {id(ds[i]): (ds[i + 1] if i + 1 < len(ds) else None) for i in range(len(ds))}
    out = []
    for i, x in enumerate(ins):
        if x.kind == 'label' and x.text == 'DMA_FIRST:':
            out += dma_setup(ds[0], None) + [Ins("s_nop 0")]
            continue
        out.append(x)
        if isinstance(x, Dma) and nxt[id(x)] is not None:
            su = dma_setup(nxt[id(x)], x)
            out += su
            if su and su[-1].text.startswith("s_add_u32 m0") and ins[i + 1] is nxt[id(x)]:
                out.append(Ins("s_nop 0"))
    return out

def stream(mf, gaps):
    o = []
    for u, m in enumerate(mf):
        o.append(m if isinstance(m, Ins) else Ins(m))
        o += gaps[u]
    return o

def vslots(g):
    n = 2
    for x in g:
        if x.kind in ('dma', 'vst', 'vld', 'trans'): n -= 2
        elif x.kind in ('dsr', 'dsw', 'valu', 'perm'): n -= 1
    return max(n, 0)

def fill(gaps, queue):
    qi = 0
    for u in range(len(gaps)):
        while qi < len(queue) and queue[qi][0] <= u:
            x = queue[qi][1]
            need = 2 if x.kind in ('trans', 'vst') else (1 if x.kind in ('valu', 'perm') else 0)
            if vslots(gaps[u]) < need: break
            gaps[u].append(x); qi += 1
    return [q[1] for q in queue[qi:]]

STAMPS = []
def stamp(name, rt=False):
    if not PROF: return []
    if PROF2 is not None and name not in PROF2: return []
    n = len(STAMPS); STAMPS.append(name)
    assert n < 64
    return [Ins("s_memrealtime s[76:77]" if rt else "s_memtime s[76:77]"), Ins("s_waitcnt lgkmcnt(0)"), Ins(f"v_writelane_b32 v1, s76, {n}")]

def mksrd(o, d, p, offreg, size):
    A = lambda s: o.append(Ins(s))
    A(f"s_add_u32 s{d}, s{p}, s{offreg}")
    A(f"s_addc_u32 s{d+1}, s{p+1}, 0")
    A(f"s_and_b32 s{d+1}, s{d+1}, 0xffff")
    A(f"s_mov_b32 s{d+2}, {size}" if isinstance(size, int) else size.format(d=d + 2))
    A(f"s_mov_b32 s{d+3}, 0x20000")

def dX(c):
    use = f"X{c-2}" if c >= 2 else None
    return [Dma(VX, SX, c * 128 + q * 40960, S_W1K, XB + (c & 1) * XSLOT + q * 4096, tag=f"X{c}", use=use, nt=OPT["dxnt"]) for q in range(7)]
def dW(c):
    use = f"W{c-2}" if c >= 2 else None
    return [Dma(VW, SWQ, c * 524288 + q * 65536, S_W1K, WB + (c & 1) * WSLOT + q * 4096, tag=f"W{c}", use=use, nt=OPT["dwnt"]) for q in range(8)]
def dK(n):
    use = {0: None, 1: None, 2: ["X8"], 3: ["X8"]}.get(n, [f"K{n-4}"])
    return [Dma(VK[e], SK, n * 8192 + hfp * 4096, S_KW, KSL[n & 3] + hfp * 4096, imm=e * 1024, tag=f"K{n}", use=use, nt=True)
            for hfp in range(2) for e in range(2)]
def dV(n):
    use = {0: ["W8"], 1: ["W8"], 2: ["X8", "X9"], 3: ["X9"]}.get(n, [f"V{n-4}"])
    return [Dma(VV, SV, n * 8192 + hfp * 4096, S_VW, VSL[n & 3] + hfp * 4096, imm=e * 2048, tag=f"V{n}", use=use, nt=True)
            for hfp in range(2) for e in range(2)]
def dWO():
    return [Dma(WOV[ii % 5], SWO, (ii // 5) * 40960, S_WOW, ii * 1024, tag="!WO", use=["K12", "K13"]) for ii in range(10)]
def pfX(c0):
    return [Ins(f"s_add_u32 s{S_TMP}, s{S_W128}, {c0 * 128}"), Ins(f"buffer_load_dword v{PFD}, v{PFX}, {srd(SX)}, s{S_TMP} offen" + (" nt" if OPT["xnt"] else ""), tag="PF")]
def pfW(k):
    return [Ins(f"buffer_load_dword v{PFD + 1}, v{PFW}, {srd(SWQ)}, s{S_PWB if k else S_PWA} offen" + (" nt" if OPT["xnt"] else ""), tag="PF")]
def pfKV(k):
    return [Ins(f"s_add_u32 s{S_TMP}, s{S_PFO}, {k * 8192}"), Ins(f"buffer_load_dword v{PFD + 2}, v{PFT}, {srd(S_PFS)}, s{S_TMP} offen nt", tag="PF")]

S_CPF = 96
def cpf_setup(o, v, t, lane, endl, basel):
    A = lambda s: o.append(Ins(s))
    A(f"s_getpc_b64 s[{S_CPF}:{S_CPF+1}]")
    A(f"{basel}:")
    A(f"s_and_b32 s{S_CPF}, s{S_CPF}, 0xfffff000")
    A(f"s_and_b32 s{S_CPF+1}, s{S_CPF+1}, 0xffff")
    A(f"s_mov_b32 s{S_CPF+2}, {endl}-{basel}")
    A(f"s_mov_b32 s{S_CPF+3}, 0x20000")
    A(f"v_lshlrev_b32 v{v}, 7, v{lane}")
def cpf(v, d, k):
    return [Ins(f"s_mov_b32 s{S_TMP}, {k * 32768}"), Ins(f"buffer_load_dword v{d}, v{v}, {srd(S_CPF)}, s{S_TMP} offen", tag="PF")]

def rA(c, dt):
    o = []
    for s in range(2):
        for sec in range(2):
            imm = (c & 1) * WSLOT + s * 16384 + sec * 2048 + (dt & 1) * 8
            o.append(Ins(f"ds_read_b64_tr_b16 {ar(AF(dt & 3, s) + sec * 2, 2)}, v{AW[dt >> 1]} offset:{imm}", tag=f"A{c}_{dt}", use=f"W{c}"))
    return o
def rB(c, t):
    return [Ins(f"ds_read_b128 {ar(BF(c & 1, t, s))}, v{AX[s]} offset:{(c & 1) * XSLOT + t * 2048}", tag=f"B{c}_{t}", use=f"X{c}") for s in range(2)]
def rK(n, kt):
    return [Ins(f"ds_read_b128 {vr(KF[kt][jj])}, v{AK[jj]} offset:{KSL[n & 3] + kt * 4096}", tag=f"KF{n}_{kt}", use=f"K{n}") for jj in range(4)]
def vbuf(n, dt): return VF[(8 * n + dt) % 3]
def rV(n, dt):
    return [Ins(f"ds_read_b64_tr_b16 {vr(vbuf(n, dt) + sec * 2, 2)}, v{AV[dt]} offset:{VSL[n & 3] + sec * 4096}", tag=f"VF{n}_{dt}", use=f"V{n}") for sec in range(2)]

def k1_setup():
    o = []
    A = lambda s: o.append(Ins(s))
    A("s_cmp_ge_u32 s2, 256"); A("s_cbranch_scc1 K1_END")
    A("s_load_dwordx16 s[48:63], s[0:1], 0")
    A("s_load_dwordx8 s[64:71], s[0:1], 64")
    A("s_load_dwordx2 s[72:73], s[0:1], 96")
    o += stamp("k1_rt0", rt=True) + stamp("k1_start")
    if OPT["cpf"]:
        cpf_setup(o, 25, 33, 0, "K1_END", "K1_BASE")
        o += cpf(25, PFD, 0)
    A("v_lshrrev_b32 v32, 6, v0")
    A("v_and_b32 v0, 63, v0")
    A(f"s_and_b32 s{S_HP}, s2, 7")
    A(f"v_readfirstlane_b32 s{S_W}, v32")
    A(f"s_lshr_b32 s{S_B}, s2, 3")
    A(f"s_lshr_b32 s{S_BR}, s{S_HP}, 2")
    A(f"s_and_b32 s{S_HP}, s{S_HP}, 3")
    A(f"s_lshl_b32 s{S_HP}, s{S_HP}, 2")
    A(f"s_and_b32 s74, s{S_B}, 3")
    A(f"s_add_u32 s{S_HP}, s{S_HP}, s74")
    A(f"s_lshr_b32 s{S_B}, s{S_B}, 2")
    A(f"s_lshr_b32 s{S_HH}, s{S_W}, 1")
    A(f"s_and_b32 s{S_HF}, s{S_W}, 1")
    A(f"s_lshl_b32 s{S_W1K}, s{S_W}, 10")
    A(f"s_lshl_b32 s{S_W128}, s{S_W}, 7")
    A(f"s_lshl_b32 s{S_PWA}, s{S_W}, 20"); A(f"s_add_u32 s{S_PWB}, s{S_PWA}, {4 * 524288}")
    A(f"s_cmp_ge_u32 s{S_W}, 2"); A(f"s_cselect_b32 s{S_PWA}, 0x40000000, s{S_PWA}")
    A("s_mul_i32 s74, s74, 56")
    A(f"v_add_u32 v{PFX}, s74, v0"); A(f"v_mul_u32_u24 v{PFX}, 1280, v{PFX}")
    A("v_lshrrev_b32 v32, 5, v0"); A("v_bfe_u32 v33, v0, 2, 3"); A("v_lshl_add_u32 v32, v32, 6, v33")
    A(f"s_lshl_b32 s74, s{S_B}, 3"); A("v_add_u32 v32, s74, v32"); A("v_lshlrev_b32 v32, 13, v32")
    A("v_and_b32 v33, 3, v0"); A(f"v_lshl_add_u32 v{PFW}, v33, 7, v32")
    A("v_lshrrev_b32 v32, 3, v0"); A("v_and_b32 v33, 7, v0"); A("v_lshrrev_b32 v34, 1, v32"); A("v_xor_b32 v33, v33, v34")
    A(f"s_lshl_b32 s74, s{S_HF}, 2"); A("v_xor_b32 v33, s74, v33")
    A(f"s_lshl_b32 s75, s{S_W}, 3"); A("v_add_u32 v32, s75, v32"); A("v_mul_u32_u24 v32, 1280, v32")
    A(f"v_lshl_add_u32 v{VX}, v33, 4, v32")
    A("v_lshrrev_b32 v32, 5, v0"); A("v_and_b32 v33, 31, v0")
    A(f"s_lshl_b32 s74, s{S_HF}, 1"); A("v_add_u32 v34, s74, v32"); A("v_lshlrev_b32 v34, 2, v34"); A("v_xor_b32 v33, v33, v34")
    A(f"s_lshl_b32 s75, s{S_W}, 1"); A("v_add_u32 v32, s75, v32"); A("v_lshlrev_b32 v32, 13, v32")
    A(f"v_lshl_add_u32 v{VW}, v33, 4, v32")
    A(f"s_cmp_eq_u32 s{S_BR}, 0")
    A("s_waitcnt lgkmcnt(0)")
    A("s_cselect_b64 s[48:49], s[48:49], s[58:59]")
    A("s_cselect_b64 s[50:51], s[50:51], s[60:61]")
    A("s_cselect_b64 s[52:53], s[52:53], s[62:63]")
    A("s_cselect_b64 s[54:55], s[54:55], s[64:65]")
    A("s_cselect_b64 s[56:57], s[56:57], s[66:67]")
    A(f"s_mul_i32 s74, s{S_B}, 286720"); mksrd(o, SX, 48, 74, 286720)
    A(f"s_lshl_b32 s74, s{S_HP}, 9"); mksrd(o, SWQ, 54, 74, "s_sub_u32 s{d}, 5242880, s74")
    o += stamp("setupA")
    if OPT["coop"]: o += pfX(0) + pfW(0)
    o.append(Ins("DMA_FIRST:"))
    o += dX(0) + dW(0)
    o += stamp("dma0")
    A(f"s_mul_i32 s74, s{S_HP}, 327680"); A(f"s_mul_i32 s75, s{S_B}, 160"); A("s_add_u32 s74, s74, s75")
    A(f"s_mul_i32 s75, s{S_W}, 81920"); A("s_add_u32 s74, s74, s75")
    mksrd(o, SWO, 56, 74, "s_sub_u32 s{d}, 5242880, s74")
    A(f"s_mul_i32 s{S_WOW}, s{S_W}, 10240"); A(f"s_add_u32 s{S_WOW}, s{S_WOW}, {SPARE}")
    A(f"s_cmp_eq_u32 s{S_W}, 3"); A(f"s_cselect_b32 s{S_WOW}, 0, s{S_WOW}")
    A(f"s_lshl_b32 s74, s{S_HP}, 1"); A(f"s_add_u32 s74, s74, s{S_HH}")
    A(f"s_lshl_b32 s75, s{S_B}, 5"); A("s_add_u32 s75, s75, s74"); A("s_lshl_b32 s75, s75, 17")
    mksrd(o, SK, 50, 75, 131072); mksrd(o, SV, 52, 75, 131072)
    A(f"s_cmp_eq_u32 s{S_HF}, 0")
    A(f"s_cselect_b64 s[{S_PFS}:{S_PFS+1}], s[{SK}:{SK+1}], s[{SV}:{SV+1}]")
    A(f"s_cselect_b32 s{S_PFO}, 16384, 0")
    A(f"s_mov_b32 s{S_PFS+2}, 131072"); A(f"s_mov_b32 s{S_PFS+3}, 0x20000")
    A(f"s_mul_i32 s74, s74, {4 * O_KS}")
    A(f"s_lshl_b32 s75, s{S_B}, 1"); A(f"s_add_u32 s75, s75, s{S_HF}"); A(f"s_mul_i32 s75, s75, {O_MT}")
    A("s_add_u32 s74, s74, s75"); A(f"s_mul_i32 s75, s{S_BR}, {O_BR}"); A("s_add_u32 s74, s74, s75")
    mksrd(o, SOW, 72, 74, 4 * O_KS)
    A(f"s_lshl_b32 s74, s{S_HP}, 3"); A(f"s_lshl_b32 s75, s{S_W}, 1"); A("s_add_u32 s74, s74, s75"); A(f"s_mul_i32 s74, s74, {WF_KS}")
    A(f"s_mul_i32 s75, s{S_B}, {WF_NT}"); A("s_add_u32 s74, s74, s75")
    A(f"s_mul_i32 s75, s{S_BR}, {WF_BR}"); A("s_add_u32 s74, s74, s75"); A(f"s_add_u32 s74, s74, {WF_OFF}")
    mksrd(o, SWF, 72, 74, 2 * WF_KS)
    if PROF:
        A("s_mov_b32 s74, 0"); mksrd(o, SDB, 70, 74, 0x40000)
    A(f"s_lshl_b32 s74, s{S_HH}, 14")
    A(f"s_lshl_b32 s75, s{S_HF}, 11"); A(f"s_add_u32 s{S_KW}, s74, s75")
    A(f"s_lshl_b32 s75, s{S_HF}, 10"); A(f"s_add_u32 s{S_VW}, s74, s75"); A(f"s_add_u32 s{S_VW}, s{S_VW}, {VB0}")
    A(f"s_mov_b32 s{S_C}, {f2h(CSCALE)}")
    A("v_lshrrev_b32 v32, 4, v0"); A("v_and_b32 v33, 15, v0")
    A("v_bfe_u32 v34, v0, 2, 2"); A("v_and_b32 v35, 3, v0")
    A(f"s_mul_i32 s75, s{S_HF}, {112 * 128}"); A(f"s_add_u32 s75, s75, {XB}")
    A("v_lshrrev_b32 v36, 1, v33"); A("v_xor_b32 v36, v36, v32")
    A("v_lshlrev_b32 v37, 7, v33"); A("v_add_u32 v37, s75, v37")
    A(f"v_lshl_add_u32 v{AX[0]}, v36, 4, v37")
    A(f"v_xor_b32 v{AX[1]}, 64, v{AX[0]}")
    A(f"s_lshl_b32 s75, s{S_HH}, 8"); A(f"s_add_u32 s75, s75, {WB}")
    A("v_lshl_add_u32 v36, v32, 3, v34"); A("v_lshlrev_b32 v36, 9, v36")
    A("v_lshl_add_u32 v36, v35, 4, v36"); A("v_add_u32 v36, s75, v36")
    A(f"v_lshl_add_u32 v{AW[0]}, v34, 6, v36")
    for j in range(1, 4): A(f"v_xor_b32 v{AW[j]}, {j * 64}, v{AW[0]}")
    A("v_xor_b32 v36, v32, v33"); A("v_lshlrev_b32 v37, 8, v33"); A("v_add_u32 v37, s74, v37")
    A(f"v_lshl_add_u32 v{AK[0]}, v36, 4, v37")
    for j in range(1, 4): A(f"v_xor_b32 v{AK[j]}, {j * 64}, v{AK[0]}")
    A(f"s_add_u32 s75, s74, {VB0}")
    A("v_lshl_add_u32 v36, v32, 2, v34")
    A("v_and_b32 v37, 7, v36"); A("v_lshlrev_b32 v37, 5, v37")
    A("v_lshl_add_u32 v37, v36, 8, v37"); A("v_lshl_add_u32 v37, v35, 3, v37")
    A(f"v_add_u32 v{AV[0]}, s75, v37")
    for d in range(1, 8): A(f"v_xor_b32 v{AV[d]}, {d * 32}, v{AV[0]}")
    A("v_mul_u32_u24 v37, 160, v36"); A("v_lshl_add_u32 v37, v35, 3, v37"); A(f"v_add_u32 v37, s{S_WOW}, v37")
    A(f"v_accvgpr_write_b32 a{WOSAVE + 5}, v37")
    A("v_xor_b32 v36, v33, v32"); A(f"s_lshl_b32 s75, s{S_HF}, 3"); A("v_xor_b32 v36, s75, v36")
    A("v_lshlrev_b32 v37, 8, v32"); A(f"s_lshl_b32 s75, s{S_HF}, 11"); A("v_add_u32 v37, s75, v37")
    A(f"v_lshl_add_u32 v{VK[0]}, v36, 4, v37"); A(f"v_xor_b32 v{VK[1]}, 64, v{VK[0]}")
    A("v_lshlrev_b32 v36, 1, v32"); A("v_xor_b32 v36, v36, v33"); A(f"s_lshl_b32 s75, s{S_HF}, 3"); A("v_xor_b32 v36, s75, v36")
    A("v_lshlrev_b32 v37, 8, v32"); A(f"s_lshl_b32 s75, s{S_HF}, 10"); A("v_add_u32 v37, s75, v37")
    A(f"v_lshl_add_u32 v{VV}, v36, 4, v37")
    A(f"v_lshlrev_b32 v{PFT}, 7, v0")
    A("s_mov_b32 s74, 6554")
    for ii in range(5): A(f"v_add_u32 v{40+ii}, {64*ii}, v0")
    for ii in range(5): A(f"v_mul_u32_u24 v{48+ii}, s74, v{40+ii}")
    for ii in range(5): A(f"v_lshrrev_b32 v{48+ii}, 16, v{48+ii}")
    for ii in range(5): A(f"v_mul_u32_u24 v{48+ii}, 1120, v{48+ii}")
    for ii in range(5): A(f"v_lshl_add_u32 v{40+ii}, v{40+ii}, 4, v{48+ii}")
    for ii in range(5): A(f"v_accvgpr_write_b32 a{WOSAVE + ii}, v{40+ii}")
    A("v_lshlrev_b32 v0, 4, v0")
    for r in range(32, 144): A(f"v_mov_b32 v{r}, 0")
    o += dX(1) + dW(1)
    for r in range(144, 256): A(f"v_mov_b32 v{r}, 0")
    return o

def conv_block(t, j):
    b = blk(t, j)
    o = [Ins(f"v_mul_f32 v{b+i}, s{S_C}, v{b+i}") for i in range(8)]
    o += [Ins(f"v_cvt_pk_bf16_f32 v{b+i}, v{b+2*i}, v{b+2*i+1}") for i in range(4)]
    return o

def qproj():
    o = []
    o += stamp("setupB") + [Wait(vm=["X0", "W0"]), Ins("s_barrier")] + stamp("first")
    o += rA(0, 0) + [x for t in range(7) for x in rB(0, t)] + rA(0, 1)
    o += [Wait(lg=["A0_0", "B0_0"])]
    carry = []
    for c in range(10):
        mf = []
        for u in range(112):
            dt, t, s = u // 14, (u % 14) // 2, u % 2
            acc = vr(blk(t, dt >> 1) + 4 * (dt & 1))
            mf.append(f"{MF} {acc}, {ar(AF(dt & 3, s))}, {ar(BF(c & 1, t, s))}, {acc}")
        g = [[] for _ in range(112)]
        for t in range(1, 7): g[2 * t - 1].append(Wait(lg=f"B{c}_{t}"))
        for p in range(1, 8):
            if p != 6: g[14 * p - 1].append(Wait(lg=f"A{c}_{p}"))
        for p in range(6):
            for i, x in enumerate(rA(c, p + 2)): g[14 * p + 1 + 2 * i].append(x)
        pos = [0, 2, 4, 6, 8, 9, 10, 11, 12, 22, 24, 26, 36, 38, 40]
        for i, d in enumerate(carry): g[pos[i]] += d
        vm = [f"X{c+1}", f"W{c+1}"] if c < 9 else ["K0"]
        if PROF: g[83] += [Wait(lg=f"A{c}_7")] + stamp(f"q{c}a") + [Wait(vm=vm), Ins("s_barrier")] + stamp(f"q{c}b")
        else: g[83] += [Wait(lg=f"A{c}_7", vm=vm), Ins("s_barrier")]
        if c <= 7: nd = dX(c + 2) + dW(c + 2)
        if c == 8: nd = dV(0) + dK(2) + dV(1)
        if c == 9: nd = dK(3)
        if c == OPT["k0st"]: nd += dK(0)
        if c == OPT["k0st"] + 1: nd += dK(1)
        nd = [[d] for d in nd]
        if OPT["coop"]:
            if c == 0: nd.append(pfX(4))
            if c == 1: nd.append(pfW(1))
            if c == 2: nd.insert(15, pfX(8))
        p0 = OPT["k0st"] + 2
        if p0 <= c < p0 + OPT["npf"]: nd.append(pfKV(c - p0))
        dpos = [84, 89, 94, 99, 104, 109]
        for i, d in enumerate(nd[:6]): g[dpos[i]] += d
        carry = nd[6:]
        if c < 9:
            rd = rA(c + 1, 0) + [x for t in range(7) for x in rB(c + 1, t)] + rA(c + 1, 1)
            rp = [u for u in range(84, 112) if u not in dpos]
            for u, x in zip(rp, rd): g[u].append(x)
            g[111].insert(0, Wait(lg=[f"A{c+1}_0", f"B{c+1}_0"]))
        tail = []
        if c == 9:
            for i, x in enumerate(rK(0, 0)): g[100 + 2 * i + 1].append(x)
            q = []
            for j in range(4):
                for t in range(7):
                    e = (2 * j + 1) * 14 + 2 * t + 1 + 8
                    q += [(e, x) for x in conv_block(t, j)]
            left = fill(g, q)
            tail = [Ins("s_nop 7")] + left
        o += stream(mf, g) + tail
    o += [Ins("v_mov_b32 v9, v25"), Wait(lg="KF0_0", vm="PF" if (OPT["coop"] or OPT["npf"] or OPT["cpf"]) else ())] + stamp("qend")
    return o

def softmax_ops(n, kt, t, sb):
    e = [Ins(f"v_exp_f32 v{sb+r}, v{sb+r}") for r in range(4)]
    first = (n == 0 and kt == 0)
    a = [Ins(f"v_mov_b32 v{LS[t]}, v{sb}") if (first and r == 0) else Ins(f"v_add_f32 v{LS[t]}, v{LS[t]}, v{sb+r}") for r in range(4)]
    p = PF[n & 1][t] + kt * 2
    c = [Ins(f"v_cvt_pk_bf16_f32 v{p+i}, v{sb+2*i}, v{sb+2*i+1}") for i in range(2)]
    return e, a, c

def body(j):
    hasPV = j >= 0
    o = []
    ds = {g: [] for g in range(14)}
    if hasPV:
        for g, dt in ((0, 1), (2, 2), (3, 3), (5, 4), (6, 5), (8, 6), (10, 7)): ds[g] = rV(j, dt)
    k1 = rK(j + 1, 1); ds[1] = k1[:2]; ds[4] = k1[2:]
    if j + 2 <= 15:
        k0 = rK(j + 2, 0); ds[7] = k0[:2]; ds[9] = k0[2:]
    ds[12] = rV(j + 1, 0)
    dm = {g: [] for g in range(14)}
    if j + 3 <= 15:
        for g, d in zip(OPT["vpos"], dV(j + 3)): dm[g].append(d)
    if 4 <= j + 4 <= 15 and j >= 0:
        for g, d in zip(OPT["kpos"], dK(j + 4)): dm[g].append(d)
    extra = {g: [] for g in range(14)}
    if j == 12:
        extra[11] = [Ins(f"v_accvgpr_read_b32 v{WOV[i]}, a{WOSAVE + i}") for i in range(5)] + [Ins(f"v_accvgpr_read_b32 v{AWO}, a{WOSAVE + 5}")]
    if j == 13:
        for g, d in zip([0, 1, 2, 4, 5, 7, 9, 11, 11, 13], dWO()): dm[g].append(d)
    if OPT["cpf"] and j in (0, 9): dm[11] += cpf(9, 8, 1 if j == 0 else 2)
    for g in range(14):
        mf, gaps = [], []
        kt, t = g // 7, g % 7
        pg, pn = (g - 1, j + 1) if g > 0 else (13, j)
        e, a, c = softmax_ops(pn, pg // 7, pg % 7, SB[pg & 1]) if pn >= 0 else ([], [], [])
        sb = vr(SB[g & 1])
        for jj in range(4):
            mf.append(f"{MF} {sb}, {vr(KF[kt][jj])}, {vr(QF(t, jj))}, {sb if jj else 0}")
            gaps.append([e[jj]] if e else [])
        d = list(ds[g]); mydm = dm[g]
        if hasPV:
            for i in range(4):
                p = 4 * g + i
                dt, tt = p // 7, p % 7
                oa = ar(OA(dt, tt))
                mf.append(f"{MF} {oa}, {vr(vbuf(j, dt))}, {vr(PF[j & 1][tt])}, {oa if j > 0 else 0}")
            if d:
                pv = [[d[0]] + a[0:1], c[0:1] + a[1:2], [d[1]] + a[2:3], mydm + c[1:2] + a[3:4]]
            else:
                pv = [a[0:1] + c[0:1], mydm[1:] + a[1:2] + c[1:2], a[2:4], mydm[:1]]
            pv[2] += extra[g]
            gaps += pv
            for i in range(4):
                p = 4 * g + i + 1
                if p % 7 == 0 and p < 56 and i < 3: gaps[4 + i].insert(0, Wait(lg=f"VF{j}_{p // 7}"))
            if (4 * g) % 7 == 0: gaps[3].insert(0, Wait(lg=f"VF{j}_{4 * g // 7}"))
        else:
            gaps[-1] += a + c
            if g == 0: gaps[-1].append(Ins("s_nop 5"))
            gaps[0] = d + mydm + gaps[0]
        if g == 6:
            vm = ([f"K{j+2}"] if j + 2 <= 15 else []) + [f"V{j+1}"]
            gaps[-1] += [Wait(lg=f"KF{j+1}_1", vm=vm), Ins("s_barrier")] + stamp(f"P{j}")
        if g == 13:
            gaps[-1].insert(0, Wait(lg=f"KF{j+2}_0" if j + 2 <= 15 else "VF15_0"))
        o += stream(mf, gaps)
    return o

def lreduce(op, T):
    o = []
    for sw in ("v_permlane32_swap_b32", "v_permlane16_swap_b32"):
        o += [Ins(f"v_mov_b32 v{T[t]}, v{LS[t]}") for t in range(7)]
        o += [Ins("s_nop 0")]
        o += [Ins(f"{sw} v{LS[t]}, v{T[t]}") for t in range(7)]
        o += [Ins(f"{op} v{LS[t]}, v{LS[t]}, v{T[t]}") for t in range(7)]
    return o

def check():
    o = []
    A = lambda s: o.append(Ins(s))
    A(f"v_min3_u32 v3, v{LS[0]}, v{LS[1]}, v{LS[2]}"); A(f"v_max3_u32 v2, v{LS[0]}, v{LS[1]}, v{LS[2]}")
    A(f"v_min3_u32 v3, v3, v{LS[3]}, v{LS[4]}"); A(f"v_max3_u32 v2, v2, v{LS[3]}, v{LS[4]}")
    A(f"v_min3_u32 v3, v3, v{LS[5]}, v{LS[6]}"); A(f"v_max3_u32 v2, v2, v{LS[5]}, v{LS[6]}")
    A(f"s_mov_b32 s74, {f2h(L_HI)}")
    A(f"v_cmp_gt_u32 vcc, {f2h(L_LO)}, v3")
    A(f"v_cmp_lt_u32 s[{S_BAD}:{S_BAD+1}], s74, v2")
    return o

def epi_block(i, t, h0, h1, pk):
    o = []
    for r in range(4): o.append(Ins(f"v_accvgpr_read_b32 v{h0+r}, a{OA(2*i, t)+r}"))
    for r in range(4): o.append(Ins(f"v_accvgpr_read_b32 v{h1+r}, a{OA(2*i+1, t)+r}"))
    for h in (h0, h1):
        for r in range(4): o.append(Ins(f"v_mul_f32 v{h+r}, v{LS[t]}, v{h+r}"))
    o.append(Ins(f"v_cvt_pk_bf16_f32 v{h0}, v{h0}, v{h0+1}")); o.append(Ins(f"v_cvt_pk_bf16_f32 v{h0+1}, v{h0+2}, v{h0+3}"))
    o.append(Ins(f"v_cvt_pk_bf16_f32 v{h0+2}, v{h1}, v{h1+1}")); o.append(Ins(f"v_cvt_pk_bf16_f32 v{h0+3}, v{h1+2}, v{h1+3}"))
    if t % 4 == 0: o.append(Ins(f"s_mov_b32 s{S_ST}, {i * O_KS + t * 1024}"))
    o.append(Ins(f"buffer_store_dwordx4 {vr(h0)}, v0, {srd(SOW)}, s{S_ST} offen" + (f" offset:{(t % 4) * 1024}" if t % 4 else ""), tag=f"OST{i}"))
    return o

EPT = [PF[0][4], PF[0][5], PF[0][6], TMPH, SB[0], SB[1]]
def epi_blocks():
    res = []; k = 0
    for i in range(4):
        for t in range(7):
            res.append((i, epi_block(i, t, EPT[(2 * k) % 6], EPT[(2 * k + 1) % 6], False))); k += 1
    return res

def final_body():
    j = 15
    o = []
    e, a, c = softmax_ops(15, 1, 6, SB[1])
    o += e[:2]
    mf = []
    for p in range(56):
        dt, tt = p // 7, p % 7
        oa = ar(OA(dt, tt))
        mf.append(f"{MF} {oa}, {vr(vbuf(j, dt))}, {vr(PF[j & 1][tt])}, {oa}")
    g = [[] for _ in range(56)]
    for gg, dt in ((0, 1), (2, 2), (3, 3), (5, 4), (6, 5), (8, 6), (10, 7)):
        r = rV(j, dt); g[4 * gg].append(r[0]); g[4 * gg + 2].append(r[1])
    g[0].append(c[0]); g[1].append(e[2]); g[2].append(a[0]); g[3].append(e[3]); g[4] += [a[1], c[1]]; g[5] += [a[2], a[3]]
    for dt in range(1, 8): g[7 * dt - 1].insert(0, Wait(lg=f"VF15_{dt}"))
    WOF = [KF[0][0], KF[0][1], KF[0][2], KF[0][3], KF[1][0], KF[1][1], KF[1][2], KF[1][3], PF[0][0], PF[0][1]]
    g[5].insert(0, Wait(vm="!WO"))
    rp = [6, 7, 9, 11, 13, 15, 16, 17, 18, 19, 21, 23, 25, 27, 28, 29, 30, 31, 33, 35]
    for k, u in enumerate(rp):
        f, sec = k // 2, k % 2
        ks, ct = f // 5, f % 5
        g[u].append(Ins(f"ds_read_b64_tr_b16 {vr(WOF[f] + sec * 2, 2)}, v{AWO} offset:{ks * 5120 + sec * 2560 + ct * 32}", tag=f"WOF{f}", use="!WO"))
    sp = [36, 37, 38, 39, 41, 43, 44, 45, 46, 47]
    for f, u in enumerate(sp):
        g[u - 1].insert(0, Wait(lg=f"WOF{f}"))
        if f % 4 == 0: g[u - 1].append(Ins(f"s_mov_b32 s{S_TMP}, {f * 1024}"))
        g[u].append(Ins(f"buffer_store_dwordx4 {vr(WOF[f])}, v0, {srd(SWF)}, s{S_TMP} offen" + (f" offset:{(f % 4) * 1024}" if f % 4 else ""), tag="WOST"))
    T = [PF[0][2] + i for i in range(4)] + [PF[0][3] + i for i in range(4)]
    q = [(6, x) for x in lreduce("v_add_f32", T) + check() + [Ins(f"v_rcp_f32 v{LS[t]}, v{LS[t]}") for t in range(7)]]
    for i, b in epi_blocks(): q += [(14 * i + 13 + 6, x) for x in b]
    left = fill(g, q)
    o += stream(mf, g)
    o += stamp("attend")
    k = max([i + 1 for i, x in enumerate(left) if x.text.startswith("v_cmp_lt_u32")] + [0])
    o += left[:k] + [Ins("s_nop 1"), Ins(f"s_or_b64 s[{S_BAD}:{S_BAD+1}], vcc, s[{S_BAD}:{S_BAD+1}]"), Ins("s_cbranch_scc1 K1_SLOW")]
    o += left[k:]
    return o

def prof_out(base, lane16, endl):
    if not PROF: return []
    o = stamp("issued") + [Ins("s_waitcnt vmcnt(0)")] + stamp("end") + stamp("rt1", rt=True)
    A = lambda s: o.append(Ins(s))
    A(f"s_cmp_lg_u32 s{S_W}, 0"); A(f"s_cbranch_scc1 {endl}")
    if PROF2 is not None:
        A(f"s_cmp_lg_u32 s2, {OPT.get('pwg', 0)}"); A(f"s_cbranch_scc1 {endl}")
        k2 = base > 4096
        A(f"v_lshrrev_b32 v39, 2, v{lane16}")
        wsp = 22 if k2 else 72
        A("s_mov_b32 s74, 0x8000000"); mksrd(o, 60, wsp, 74, 44)
        if k2:
            A("buffer_load_dword v40, v39, s[60:63], 0 offen"); A("s_waitcnt vmcnt(0)")
            A(f"s_mov_b32 s{SDB+2}, 44"); A(f"buffer_store_dword v40, v39, {srd(SDB)}, 0 offen")
            A(f"s_mov_b32 s{SDB+2}, 64"); A(f"buffer_store_dword v1, v39, {srd(SDB)}, 0 offen offset:44")
        else:
            A("buffer_store_dword v1, v39, s[60:63], 0 offen")
        return o
    A("s_lshl_b32 s74, s2, 8"); A(f"s_add_u32 s74, s74, {base}")
    A(f"v_lshrrev_b32 v39, 2, v{lane16}"); A("v_add_u32 v39, s74, v39")
    A(f"buffer_store_dword v1, v39, {srd(SDB)}, 0 offen")
    return o

def slow_path():
    o = [Ins("K1_SLOW:")]
    A = lambda s: o.append(Ins(s))
    M = list(range(2, 9))
    T = [KF[0][0] + i for i in range(4)] + [KF[0][1] + i for i in range(4)]
    DK = [PF[1][0] + i for i in range(4)]; DV = [PF[1][1], PF[1][1] + 1]; G, N = PF[1][1] + 2, PF[1][1] + 3
    A("s_waitcnt vmcnt(0) lgkmcnt(0)")
    A("s_nop 7")
    A(f"s_lshl_b32 s74, s{S_W}, 13"); A(f"s_add_u32 s74, s74, {SLOWB}")
    A(f"s_lshl_b32 s75, s{S_HH}, 14"); A("s_sub_u32 s66, s74, s75"); A(f"s_sub_u32 s67, s66, {VB0}")
    for r in AK: A(f"v_add_u32 v{r}, s66, v{r}")
    for r in AV: A(f"v_add_u32 v{r}, s67, v{r}")
    A(f"v_lshrrev_b32 v{G}, 8, v0")
    A(f"v_bfe_u32 v{N}, v0, 4, 4")
    A(f"v_xor_b32 v{DK[0]}, v{G}, v{N}"); A(f"v_lshlrev_b32 v{DK[0]}, 4, v{DK[0]}"); A(f"v_lshl_add_u32 v{DK[0]}, v{G}, 8, v{DK[0]}")
    for e in range(1, 4): A(f"v_xor_b32 v{DK[e]}, {64 * e}, v{DK[0]}")
    A(f"v_lshlrev_b32 v{DV[0]}, 1, v{G}"); A(f"v_xor_b32 v{DV[0]}, v{DV[0]}, v{N}"); A(f"v_lshlrev_b32 v{DV[0]}, 4, v{DV[0]}")
    A(f"v_lshl_add_u32 v{DV[0]}, v{G}, 8, v{DV[0]}"); A(f"v_xor_b32 v{DV[1]}, 128, v{DV[0]}")
    A("s_add_u32 s75, s74, 4096")
    def load(sr, regs):
        A("s_mov_b32 m0, s74"); A("s_nop 0")
        for i in range(4): A(f"buffer_load_dwordx4 v{regs[i % len(regs)]}, {srd(sr)}, s68 offen offset:{i * 1024} lds")
        A("s_mov_b32 m0, s75"); A("s_add_u32 s69, s68, 4096")
        for i in range(4): A(f"buffer_load_dwordx4 v{regs[i % len(regs)]}, {srd(sr)}, s69 offen offset:{i * 1024} lds")
    def kread():
        A("s_waitcnt vmcnt(0)")
        for kt in range(2):
            for jj in range(4): A(f"ds_read_b128 {vr(KF[kt][jj])}, v{AK[jj]} offset:{kt * 4096}")
        A("s_waitcnt lgkmcnt(0)")
    def qk(t):
        for kt in range(2):
            sb = vr(SB[kt])
            for jj in range(4): A(f"{MF} {sb}, {vr(KF[kt][jj])}, {vr(QF(t, jj))}, {sb if jj else 0}")
        A("s_nop 7")
    for t in range(7): A(f"v_mov_b32 v{LS[t]}, 0xff800000")
    A("s_mov_b32 s68, 0")
    A("K1_SL1:")
    load(SK, DK); kread()
    for t in range(7):
        qk(t)
        for kt in range(2):
            A(f"v_max3_f32 v{LS[t]}, v{LS[t]}, v{SB[kt]}, v{SB[kt]+1}"); A(f"v_max3_f32 v{LS[t]}, v{LS[t]}, v{SB[kt]+2}, v{SB[kt]+3}")
    A("s_add_u32 s68, s68, 8192"); A("s_cmp_lt_u32 s68, 131072"); A("s_cbranch_scc1 K1_SL1")
    o += lreduce("v_max_f32", T)
    for t in range(7): A(f"v_mov_b32 v{M[t]}, v{LS[t]}")
    for t in range(7): A(f"v_mov_b32 v{LS[t]}, 0")
    for r in range(224): A(f"v_accvgpr_write_b32 a{r}, 0")
    A("s_mov_b32 s68, 0")
    A("K1_SL2:")
    load(SK, DK); kread()
    load(SV, DV)
    for t in range(7):
        qk(t)
        for kt in range(2):
            for r in range(4): A(f"v_sub_f32 v{SB[kt]+r}, v{SB[kt]+r}, v{M[t]}")
            for r in range(4): A(f"v_exp_f32 v{SB[kt]+r}, v{SB[kt]+r}")
            A("s_nop 0")
            for r in range(4): A(f"v_add_f32 v{LS[t]}, v{LS[t]}, v{SB[kt]+r}")
            for i in range(2): A(f"v_cvt_pk_bf16_f32 v{PF[0][t] + kt * 2 + i}, v{SB[kt]+2*i}, v{SB[kt]+2*i+1}")
    A("s_waitcnt vmcnt(0)")
    for dt in range(8):
        for sec in range(2): A(f"ds_read_b64_tr_b16 {vr(VF[0] + sec * 2, 2)}, v{AV[dt]} offset:{sec * 4096}")
        A("s_waitcnt lgkmcnt(0)")
        for t in range(7): A(f"{MF} {ar(OA(dt, t))}, {vr(VF[0])}, {vr(PF[0][t])}, {ar(OA(dt, t))}")
    A("s_add_u32 s68, s68, 8192"); A("s_cmp_lt_u32 s68, 131072"); A("s_cbranch_scc1 K1_SL2")
    A("s_nop 7")
    o += lreduce("v_add_f32", T)
    o += [Ins(f"v_rcp_f32 v{LS[t]}, v{LS[t]}") for t in range(7)]
    for i, b in epi_blocks(): o += b
    A("s_branch K1_DONE")
    return o

def k1():
    main = k1_setup() + qproj()
    for j in range(-1, 15): main += body(j)
    main += final_body()
    main += [Ins("K1_DONE:")] + prof_out(4096, 0, "K1_END")
    main = resolve(link_dmas(main))
    errs = validate(main, "k1")
    sl = slow_path()
    errs += validate(sl, "slow")
    return main + [Ins("K1_END:"), Ins("s_endpgm")] + sl, errs, main

def k2():
    o = []
    A = lambda s: o.append(Ins(s))
    SO, SWW, SOUT = 4, 8, 12
    A("s_cmp_ge_u32 s2, 256"); A("s_cbranch_scc1 K2_END")
    A("s_load_dwordx2 s[20:21], s[0:1], 80")
    A("s_load_dwordx2 s[22:23], s[0:1], 96")
    if PROF:
        A("s_load_dwordx2 s[70:71], s[0:1], 88")
        STAMPS.clear()
    o += stamp("k2_rt0", rt=True) + stamp("k2_start")
    if OPT["cpf"]:
        cpf_setup(o, 5, 6, 0, "K2_END", "K2_BASE")
        o += cpf(5, 7, 0)
    A("v_lshrrev_b32 v3, 6, v0"); A("v_and_b32 v0, 63, v0")
    A("s_and_b32 s24, s2, 7"); A(f"v_readfirstlane_b32 s{S_W}, v3"); A("s_lshr_b32 s25, s2, 3")
    A("s_lshr_b32 s26, s24, 2")
    A("s_and_b32 s24, s24, 3"); A("s_lshl_b32 s24, s24, 2"); A("s_lshr_b32 s27, s25, 3"); A("s_add_u32 s24, s24, s27")
    A("s_and_b32 s25, s25, 7")
    A("v_lshlrev_b32 v2, 4, v0")
    A(f"s_mul_i32 s28, s26, {O_BR}"); A(f"s_mul_i32 s29, s24, {O_MT}"); A("s_add_u32 s28, s28, s29")
    A(f"s_mul_i32 s29, s{S_W}, {2 * O_KS}"); A("s_add_u32 s28, s28, s29")
    A(f"s_mul_i32 s30, s26, {WF_BR}"); A(f"s_mul_i32 s29, s25, {WF_NT}"); A("s_add_u32 s30, s30, s29")
    A(f"s_mul_i32 s29, s{S_W}, {2 * WF_KS}"); A("s_add_u32 s30, s30, s29"); A(f"s_add_u32 s30, s30, {WF_OFF}")
    A("s_waitcnt lgkmcnt(0)")
    mksrd(o, SO, 22, 28, O_MT); mksrd(o, SWW, 22, 30, WF_NT)
    def fr(buf, idx): return vr(8 + buf * 96 + idx * 4) if buf < 2 else ar(140 + idx * 4)
    def OFr(buf, t, s): return fr(buf, s * 7 + t)
    def WFr(buf, ct, s): return fr(buf, 14 + s * 5 + ct)
    def loads(i):
        buf = i % 3
        seq = [("W", 0, 0), ("W", 0, 1)] + [("O", t, s) for t in range(7) for s in range(2)] + [("W", ct, s) for ct in range(1, 5) for s in range(2)]
        res = []
        for kind, a, s in seq:
            if kind == "O": off = i * 8 * O_KS + s * O_KS + a * 1024; dst = OFr(buf, a, s); sr = SO
            else: off = i * 8 * WF_KS + s * WF_KS + a * 1024; dst = WFr(buf, a, s); sr = SWW
            res.append([Ins(f"s_mov_b32 s40, {off}"), Ins(f"buffer_load_dwordx4 {dst}, v2, {srd(sr)}, s40 offen", tag=f"{kind}{i}_{a}")])
        return res
    for l in loads(0): o += l
    A("s_mul_i32 s28, s24, 286720"); A("s_mul_i32 s29, s26, 1280"); A("s_add_u32 s28, s28, s29")
    A("s_mul_i32 s29, s25, 160"); A("s_add_u32 s28, s28, s29")
    mksrd(o, SOUT, 20, 28, "s_sub_u32 s{d}, 4587520, s28")
    if PROF:
        A("s_mov_b32 s74, 0"); mksrd(o, SDB, 70, 74, 0x40000)
    A("v_and_b32 v3, 15, v0"); A("v_mul_u32_u24 v3, 2560, v3"); A("v_lshrrev_b32 v4, 4, v0"); A("v_lshl_add_u32 v3, v4, 3, v3")
    A(f"s_mul_i32 s28, s{S_W}, 35840"); A("v_add_u32 v4, s28, v2")
    A(f"s_lshl_b32 s28, s{S_W}, 10"); A("v_add_u32 v200, s28, v2")
    for sw in range(1, 4): A(f"v_add_u32 v{200 + sw}, {sw * 35840}, v200")
    o += stamp("setup")
    for i in range(16):
        buf = i % 3
        mf, g = [], [[] for _ in range(70)]
        for u in range(70):
            ct, t, s = u // 14, (u % 14) // 2, u % 2
            acc = ar((ct * 7 + t) * 4)
            mf.append(f"{MF} {acc}, {WFr(buf, ct, s)}, {OFr(buf, t, s)}, {acc if (i or s) else 0}")
        o.append(Wait(vm=[f"W{i}_0", f"O{i}_0"]))
        for t in range(1, 7): g[2 * t - 1].append(Wait(vm=f"O{i}_{t}"))
        for ct in range(1, 5): g[14 * ct - 1].append(Wait(vm=f"W{i}_{ct}"))
        if i == 0:
            for k, l in enumerate(loads(1) + loads(2)): g[14 + k] += l
        elif i + 2 < 16:
            for k, l in enumerate(loads(i + 2)): g[2 * k] += l
        o += stream(mf, g)
        o += stamp(f"s{i}")
    A("s_nop 7")
    for q in range(35): o.append(Ins(f"ds_write_b128 v4, {ar(q * 4)} offset:{q * 1024}"))
    A("s_waitcnt lgkmcnt(0)"); A("s_barrier")
    o += stamp("wr")
    for i in range(9):
        for sw in range(4):
            o.append(Ins(f"ds_read_b128 {vr(8 + (i * 4 + sw) * 4)}, v{200 + sw} offset:{i * 4096}", tag=f"R{i}"))
    for i in range(9):
        b = 8 + i * 16
        o.append(Wait(lg=f"R{i}"))
        A(f"s_add_u32 s28, s{S_W}, {4 * i}")
        A("s_mul_i32 s29, s28, 37"); A("s_lshr_b32 s29, s29, 8")
        A("s_mul_i32 s30, s29, 7"); A("s_sub_u32 s30, s28, s30")
        A("s_mul_i32 s30, s30, 40960"); A("s_lshl_b32 s29, s29, 5"); A("s_add_u32 s30, s30, s29")
        A("s_cmp_ge_u32 s28, 35"); A("s_cselect_b32 s30, 0x40000000, s30")
        for r in range(4): A(f"v_add_f32 v{b+r}, v{b+r}, v{b+4+r}")
        for r in range(4): A(f"v_add_f32 v{b+8+r}, v{b+8+r}, v{b+12+r}")
        for r in range(4): A(f"v_add_f32 v{b+r}, v{b+r}, v{b+8+r}")
        A(f"v_cvt_pk_bf16_f32 v{b}, v{b}, v{b+1}"); A(f"v_cvt_pk_bf16_f32 v{b+1}, v{b+2}, v{b+3}")
        o.append(Ins(f"buffer_store_dwordx2 {vr(b, 2)}, v3, {srd(SOUT)}, s30 offen"))
    o += prof_out(4096 + 65536, 2, "K2_END")
    o = resolve(o)
    errs = validate(o, "k2")
    return o + [Ins("K2_END:"), Ins("s_endpgm")], errs, o

def kd(name, vgpr, accum):
    return f""".amdhsa_kernel {name}
  .amdhsa_next_free_vgpr {vgpr}
  .amdhsa_next_free_sgpr 102
  .amdhsa_accum_offset {accum}
  .amdhsa_group_segment_fixed_size 0
  .amdhsa_kernarg_size 104
  .amdhsa_user_sgpr_count 2
  .amdhsa_user_sgpr_kernarg_segment_ptr 1
  .amdhsa_system_sgpr_workgroup_id_x 1
.end_amdhsa_kernel
"""

def build(path):
    STAMPS.clear()
    c1, e1, m1 = k1()
    st1 = list(STAMPS)
    c2, e2, m2 = k2()
    if PROF: json.dump([st1, list(STAMPS)], open(path + ".stamps", "w"))
    for e in (e1 + e2)[:40]: print("ERR", e)
    print(path, "k1 insns", len(c1), "est cycles", estimate(m1), "| k2 insns", len(c2), "est", estimate(m2), "| errors", len(e1) + len(e2))
    s = []
    s.append("; @launch kernel=attn_kernel grid=(256,1,1) block=(256,1,1) lds=163840")
    s.append("; @launch kernel=oproj_kernel grid=(256,1,1) block=(256,1,1) lds=163840")
    s.append('.amdgcn_target "amdgcn-amd-amdhsa--gfx950"')
    s.append(".text")
    for name, code in (("attn_kernel", c1), ("oproj_kernel", c2)):
        s += [f".globl {name}", ".p2align 8", f".type {name},@function", f"{name}:"]
        s += [("" if x.kind == 'label' else "  ") + x.text for x in code]
    s += ['.section .rodata,"a"', ".p2align 6", kd("attn_kernel", 512, 256), ".p2align 6", kd("oproj_kernel", 512, 256)]
    open(path, "w").write("\n".join(s) + "\n")

if __name__ == "__main__":
    args = sys.argv[1:]
    if "--prof" in args: PROF = True
    if "--prof2" in args:
        PROF = True; PROF2 = ["k1_rt0", "k1_start", "first", "q4b", "qend", "P3", "P9", "attend", "issued", "end", "rt1", "k2_rt0", "k2_start"]
    for a in args:
        if "=" in a:
            k, v = a.split("="); OPT[k] = json.loads(v)
    out = [a for a in args if not a.startswith("--") and "=" not in a]
    build(out[0] if out else "k.s")
```
